```python
import torch

def _softmax(x, axis=-1):
    return torch.softmax(x, dim=axis)
def _gelu(x):
    return torch.nn.functional.gelu(x, approximate="tanh")
def _silu(x):
    return torch.nn.functional.silu(x)
def _sigmoid(x):
    return torch.sigmoid(x)
def _layernorm(x, axis=-1, eps=1e-5):
    m = x.mean(dim=axis, keepdim=True)
    v = x.var(dim=axis, keepdim=True, unbiased=False)
    return (x - m) / torch.sqrt(v + eps)
def _scatter_add(tgt, idx, src, axis=0):
    return tgt.clone().index_add_(axis, idx, src)
def _segment_sum(src, seg, n):
    out = torch.zeros((n,) + src.shape[1:], dtype=src.dtype)
    return out.index_add_(0, seg, src)
def _pad(x, pw):
    flat = tuple(v for pair in reversed(pw) for v in pair)
    return torch.nn.functional.pad(x, flat)

kernel_name = 'standalone__mha_block_cached__near_ridge'

def setup_inputs():

    _w = (lambda a: (lambda t: t.to(torch.bfloat16) if t.is_floating_point() else t)(torch.as_tensor(a)))
    B, Sq, D = 16, 208, 1024
    H, Sk, Dh = 32, 1024, 128
    return {
        "x": _w((lambda *s: torch.randn(*s, dtype=torch.bfloat16) * 0.8)(B, Sq, D)),
        "k_cache": _w((lambda *s: torch.randn(*s, dtype=torch.bfloat16) * 0.8)(B, H, Sk, Dh)),
        "v_cache": _w((lambda *s: torch.randn(*s, dtype=torch.bfloat16) * 0.05)(B, H, Sk, Dh)),
        "wq": _w((lambda *s: torch.randn(*s, dtype=torch.bfloat16) * 0.8)(D, H * Dh) * (D ** -0.5)),
        "wo": _w((lambda *s: torch.randn(*s, dtype=torch.bfloat16) * 0.05)(H * Dh, D) * ((H * Dh) ** -0.5)),
    }

def reference(x, k_cache, v_cache, wq, wo):
    B, Sq, D = x.shape
    H, Dh = 32, 128
    q = (lambda x, *d: x.permute(*d))((x @ wq).reshape(B, Sq, H, Dh), 0, 2, 1, 3)
    scores = torch.einsum("bhqd,bhkd->bhqk", q, k_cache) * (Dh ** -0.5)
    p = _softmax(scores, axis=-1)
    o = torch.einsum("bhqk,bhkd->bhqd", p, v_cache)
    return (lambda x, *d: x.permute(*d))(o, 0, 2, 1, 3).reshape(B, Sq, H * Dh) @ wo
```

```python
import re

def R(pre, lo, n=1):
    return [f"{pre}{lo+i}" for i in range(n)]
def rng(pre, lo, n):
    return f"{pre}{lo}" if n == 1 else f"{pre}[{lo}:{lo+n-1}]"

class Reg:
    def __init__(self, f, b, n=1): self.f, self.b, self.n = f, b, n
    def __str__(self): return rng(self.f, self.b, self.n)
    def regs(self): return R(self.f, self.b, self.n)
    def __getitem__(self, i):
        if isinstance(i, slice):
            st = i.start or 0; en = i.stop if i.stop is not None else self.n
            assert 0 <= st < en <= self.n, (st, en, self.n)
            return Reg(self.f, self.b + st, en - st)
        assert 0 <= i < self.n, (i, self.n)
        return Reg(self.f, self.b + i, 1)
def V(b, n=1): return Reg('v', b, n)
def A(b, n=1): return Reg('a', b, n)
def S(b, n=1): return Reg('s', b, n)

def regs_of(x):
    if isinstance(x, Reg): return x.regs()
    if isinstance(x, str):
        if x in ("vcc", "exec", "m0", "scc"): return [x]
        m = re.fullmatch(r"-?\|?([vas])(\d+)\|?", x)
        if m: return [m.group(1) + m.group(2)]
        m = re.fullmatch(r"([vas])\[(\d+):(\d+)\]", x)
        if m: return R(m.group(1), int(m.group(2)), int(m.group(3)) - int(m.group(2)) + 1)
    return []

class I:
    __slots__ = ("text", "kind", "rd", "wr", "post_lgkm", "pre_lgkm", "mf", "nstates", "comment")
    def __init__(self, text, kind, rd=(), wr=(), mf=None, nstates=1):
        self.text, self.kind = text, kind
        self.rd = set(); self.wr = set()
        for x in rd: self.rd.update(regs_of(x))
        for x in wr: self.wr.update(regs_of(x))
        self.post_lgkm = None; self.pre_lgkm = None
        self.mf = mf
        self.nstates = nstates
    def __repr__(self): return self.text

def mfma16(D, Aop, Bop, C):
    c = C if isinstance(C, Reg) else None
    return I(f"v_mfma_f32_16x16x32_bf16 {D}, {Aop}, {Bop}, {C}", "mfma", rd=[Aop, Bop] + ([c] if c else []), wr=[D],
             mf=dict(A=set(Aop.regs()), B=set(Bop.regs()), C=set(c.regs()) if c else set(), D=set(D.regs()), passes=4))
def valu(op, dst, *src, extra="", rmw=False, wr_extra=(), rd_extra=()):
    t = f"{op} {dst}, " + ", ".join(str(s) for s in src) + (" " + extra if extra else "")
    kind = "trans" if op.split("_e")[0] in ("v_exp_f32", "v_rcp_f32", "v_log_f32", "v_rsq_f32") else "valu"
    rd = list(src) + ([dst] if rmw else []) + list(rd_extra)
    return I(t, kind, rd=rd, wr=[dst] + list(wr_extra))
def permswap(op, a, b):
    return I(f"{op} {a}, {b}", "perm", rd=[a, b], wr=[a, b])
def salu(op, dst, *src):
    t = f"{op} {dst}, " + ", ".join(str(s) for s in src)
    return I(t, "salu", rd=list(src), wr=[dst, "scc"])
def scmp(op, a, b):
    return I(f"{op} {a}, {b}", "salu", rd=[a, b], wr=["scc"])
def ds_r(op, dst, addr, off):
    assert 0 <= off < 65536, off
    return I(f"{op} {dst}, {addr} offset:{off}", "lds_r", rd=[addr], wr=[dst])
def ds_w(op, addr, src, off):
    assert 0 <= off < 65536, off
    return I(f"{op} {addr}, {src} offset:{off}", "lds_w", rd=[addr, src])
def dma(voff, srd, soff, off=0, flags=""):
    assert 0 <= off < 4096
    return I(f"buffer_load_dwordx4 {voff}, {srd}, {soff} offen offset:{off}{(' ' + flags) if flags else ''} lds", "dma", rd=[voff, srd, soff, "m0"])
def bload(dst, voff, srd, soff, off=0, flags=""):
    assert 0 <= off < 4096
    op = {1: "dword", 2: "dwordx2", 4: "dwordx4"}[dst.n]
    return I(f"buffer_load_{op} {dst}, {voff}, {srd}, {soff} offen offset:{off}{(' ' + flags) if flags else ''}", "vmem_l", rd=[voff, srd, soff], wr=[dst])
def bstore(src, voff, srd, soff, off=0, flags=""):
    assert 0 <= off < 4096
    op = {1: "dword", 2: "dwordx2", 4: "dwordx4"}[src.n]
    return I(f"buffer_store_{op} {src}, {voff}, {srd}, {soff} offen offset:{off}{(' ' + flags) if flags else ''}", "vmem_s", rd=[src, voff, srd, soff])
def wait(vm=None, lgkm=None):
    t = "s_waitcnt" + (f" vmcnt({vm})" if vm is not None else "") + (f" lgkmcnt({lgkm})" if lgkm is not None else "")
    i = I(t, "wait"); i.mf = dict(vm=vm, lgkm=lgkm); return i
def nop(n):
    assert 1 <= n <= 16
    return I(f"s_nop {n-1}", "nop", nstates=n)
def barrier(): return I("s_barrier", "barrier")
def label(n): return I(f"{n}:", "label", nstates=0)
def branch(op, tgt): return I(f"{op} {tgt}", "branch", rd=["scc", "vcc"])
def raw(t, kind="other", rd=(), wr=()): return I(t, kind, rd=rd, wr=wr)
def comment(t): return I("; " + t, "label", nstates=0)

def auto_lgkm(trace):
    changes = 0
    pend = []
    last_mfma = None
    for idx, ins in enumerate(trace):
        def apply(n):
            nonlocal pend
            if n is not None and len(pend) > n: pend = pend[len(pend) - n:] if n else []
        apply(ins.pre_lgkm)
        if ins.kind == "wait": apply(ins.mf["lgkm"])
        touched = ins.rd | ins.wr
        need = -1
        for k, (ti, rg) in enumerate(pend):
            if rg & touched: need = k
        if need >= 0:
            ti = pend[need][0]
            if last_mfma is not None and last_mfma > ti and all(trace[q].kind not in ("label", "branch") or trace[q].text.startswith(";") for q in range(last_mfma, idx)):
                n = sum(1 for (t2, _) in pend[need + 1:] if t2 < last_mfma)
                q = trace[last_mfma]
                if q.post_lgkm is None or q.post_lgkm > n: q.post_lgkm = n; changes += 1
            else:
                n = len(pend) - need - 1
                if ins.pre_lgkm is None or ins.pre_lgkm > n: ins.pre_lgkm = n; changes += 1
            pend = pend[need + 1:]
        if ins.kind in ("lds_r", "lds_w") and len(pend) >= 15:
            if last_mfma is not None and last_mfma > pend[-1][0] and all(trace[q].kind not in ("label", "branch") or trace[q].text.startswith(";") for q in range(last_mfma, idx)):
                q = trace[last_mfma]
                if q.post_lgkm is None or q.post_lgkm > 8: q.post_lgkm = 8; changes += 1
            else:
                if ins.pre_lgkm is None or ins.pre_lgkm > 8: ins.pre_lgkm = 8; changes += 1
            pend = pend[-8:]
        if ins.kind == "lds_r": pend.append((idx, set(ins.wr)))
        elif ins.kind == "lds_w": pend.append((idx, set()))
        if ins.kind == "mfma": last_mfma = idx
        apply(ins.post_lgkm)
    return changes

def expand(seq):
    out = []
    for ins in seq:
        if ins.pre_lgkm is not None: out.append(wait(lgkm=ins.pre_lgkm))
        out.append(ins)
        if ins.post_lgkm is not None: out.append(wait(lgkm=ins.post_lgkm))
    return out

VALUK = ("valu", "trans", "perm")
def check_hazards(trace, name=""):
    probs = []
    pos = []; p = 0
    for ins in trace:
        pos.append(p); p += ins.nstates
    n = len(trace)
    def dist(i, j):
        return pos[j] - pos[i] - trace[i].nstates
    for i, a in enumerate(trace):
        if a.kind in ("label", "nop", "wait", "barrier", "branch"): continue
        for j in range(i + 1, min(n, i + 40)):
            b = trace[j]
            d = dist(i, j)
            if d >= 20: break
            need = 0; why = ""
            if a.kind == "mfma":
                D = a.mf["D"]
                if b.kind == "mfma":
                    if D & (b.mf["A"] | b.mf["B"]): need, why = 8, "mfma D->A/B"
                    elif D & b.mf["C"] and b.mf["C"] != D: need, why = 6, "mfma D->C partial"
                elif b.kind in VALUK + ("lds_r", "lds_w", "vmem_l", "vmem_s", "dma"):
                    if D & (b.rd | b.wr): need, why = 8, "mfma D->valu/mem"
                if b.kind in VALUK and a.mf["C"] & b.wr: need, why = max(need, 3), why + " srcC WAR"
            if a.kind in VALUK:
                vw = {r for r in a.wr if r[0] in "va" and r != "vcc"}
                sw = {r for r in a.wr if r[0] == "s" or r == "vcc"}
                if b.kind == "mfma" and vw & b.rd: need, why = max(need, 2), "valu->mfma"
                if b.kind == "perm" and vw & b.rd: need, why = max(need, 2), "valu->perm"
                if a.kind == "trans" and b.kind in ("valu", "perm") and vw & b.rd: need, why = max(need, 1), "trans->valu"
                if ("readfirstlane" in b.text or "readlane" in b.text) and vw & b.rd: need, why = max(need, 1), "valu->readlane"
                if sw & b.rd and b.kind in ("vmem_l", "vmem_s", "dma"): need, why = max(need, 5), "valu sgpr->vmem"
                if sw & b.rd and b.kind in VALUK: need, why = max(need, 2), "valu sgpr->valu"
            if a.kind == "salu" and "m0" in a.wr and b.kind == "dma": need, why = max(need, 1), "m0->dma"
            if a.kind == "vmem_s" and "x4" in a.text and b.kind in VALUK and (a.rd & b.wr): need, why = max(need, 2), "store data WAR"
            if need > d:
                probs.append(f"{name}: hazard {why}: need {need} have {d}:\n    {a.text}\n    {b.text}")
    return probs

def text(seq):
    out = []
    for ins in seq:
        out.append(ins.text if ins.kind == "label" and not ins.text.startswith(";") else "  " + ins.text)
    return "\n".join(out) + "\n"
```

```python
from fw import *
import struct
def f32(x): return "0x%08x" % struct.unpack("<I", struct.pack("<f", x))[0]
KB = 1024
NT = 7
QSCALE = 1.4426950408889634 * (128 ** -0.5)

sW, sHH, sHALF, sB, sHEAD = S(3), S(4), S(5), S(6), S(7)
SRD_X, SRD_W, SRD_K, SRD_V, SRD_O = S(8, 4), S(12, 4), S(16, 4), S(20, 4), S(24, 4)
sXld, sWld, sSPld = S(40), S(41), S(42)
sXoff, sWoff, sKoff = S(43), S(44), S(45)
sT = [S(46), S(47), S(48), S(49)]
sCnt, sFB = S(50), S(51)
sScale = S(52, 2)
sOoff = S(54)
sTmp2 = S(56, 2)

vLane, vT0, vT1, vT2 = V(1), V(2), V(3), V(29)
vXd, vWd, vKd = V(4), V(5), V(6)
vXr = [V(7), V(8)]
vWr = [V(9 + i) for i in range(4)]
vKr = [V(13 + i) for i in range(4)]
vVr = [V(17 + i) for i in range(8)]
vKs = [V(25 + i) for i in range(4)]
vOst = V(30)
ACC0 = 32
def acc(t, f): return V(ACC0 + t * 32 + f * 4, 4)
def Qf(t, ds): return V(ACC0 + t * 16 + ds * 4, 4)
FREE0 = ACC0 + 112
O6 = FREE0
SB = [V(FREE0 + 32, 8), V(FREE0 + 40, 8)]
PB = [V(FREE0 + 48, 4), V(FREE0 + 52, 4)]
def Cm(t): return V(FREE0 + 56 + 4 * t, 4)
def Lr(t): return V(FREE0 + 84 + t)
vTMP = FREE0 + 92
def Oacc(t, dt): return A(t * 32 + dt * 4, 4) if t < 6 else V(O6 + dt * 4, 4)
def Kf(f): return A(192 + 4 * f, 4)
def Vf(dt): return A(224 + 4 * dt, 4)
def Wset(p, f): return A(192 + 32 * p + 4 * f, 4)
def Xset(p, t): return A(28 * p + 4 * t, 4)

def inter(mf, gaps):
    out = []
    assert all(0 <= k < len(mf) for k in gaps), (sorted(gaps), len(mf))
    order = lambda i: 0 if i.kind in ("salu", "wait", "barrier", "branch", "label") else (1 if i.kind in ("lds_r", "lds_w", "dma", "vmem_l", "vmem_s") else 2)
    for k, m in enumerate(mf):
        out.append(m)
        out.extend(sorted(gaps.get(k, []), key=order))
    return out

def wchunk(s): return (1 + 4 * (s & 1) + 2 * ((s >> 1) & 1)) * 8 * KB

def dma_w(s):
    g = []
    for p in range(4):
        ops = []
        if p == 0: ops.append(salu("s_add_u32", "m0", sWld, wchunk(s)))
        ops.append(salu("s_add_u32", sT[p & 1], sWoff, p * 31744))
        ops.append(dma(vWd, SRD_W, sT[p & 1], p * KB))
        g.append(ops)
    g.append([salu("s_add_u32", sWoff, sWoff, 262144)])
    return g
def dma_x(par):
    g = []
    for t in range(7):
        ops = []
        if t in (0, 4): ops.append(salu("s_add_u32", "m0", sXld, par * 16 * KB + (t >> 2) * 4096))
        ops.append(salu("s_add_u32", sT[t & 1], sXoff, t * 32768 - (t & 3) * KB))
        ops.append(dma(vXd, SRD_X, sT[t & 1], (t & 3) * KB))
        g.append(ops)
    g.append([salu("s_add_u32", sXoff, sXoff, 128)])
    return g
def dma_kv(which, base, off, soff):
    srd = SRD_K if which == "K" else SRD_V
    g = [[salu("s_add_u32", "m0", base, off)]]
    for p in range(4): g.append([dma(vKd, srd, soff, p * KB, "nt")])
    return g

def reads_w(s):
    r = []
    for f in range(8):
        ds, T = f >> 1, f & 1
        for a in range(2):
            r.append(ds_r("ds_read_b64_tr_b16", Wset(s & 1, f)[2 * a:2 * a + 2], vWr[ds], wchunk(s) + a * KB + 8 * T))
    return r
def reads_x(a):
    r = []
    for sp in range(2):
        for t in range(NT):
            r.append(ds_r("ds_read_b128", Xset((a & 1) * 2 + sp, t), vXr[sp], (a & 1) * 16 * KB + t * KB))
    return r
def read_k(f, addr, off): return ds_r("ds_read_b128", Kf(f), addr[f & 3], off + (f >> 2) * 2048)
def read_v(dt, kt, addr, off): return ds_r("ds_read_b64_tr_b16", Vf(dt)[2 * kt:2 * kt + 2], addr[dt], off + kt * 2048)

def kstep(s, vm, reads, dmas):
    mf = []
    a = s >> 1
    for t in range(NT):
        for f in range(8):
            mf.append(mfma16(acc(t, f), Wset(s & 1, f), Xset((a & 1) * 2 + (s & 1), t), acc(t, f)))
    gaps = {}
    k = 0
    for r in reads:
        gaps.setdefault(k, []).append(r); k += 1
    k = max(k, 2)
    step = max(1, (len(mf) - 2 - k) // max(1, len(dmas)))
    for g in dmas:
        gaps.setdefault(k, []).extend(g); k += step
    head = [wait(vm=vm, lgkm=0), barrier()]
    return head + inter(mf, gaps)

def qk_block(t, sb, cinit=True):
    mf = []
    for kt in range(2):
        D = SB[sb][4 * kt:4 * kt + 4]
        for ds in range(4):
            mf.append(mfma16(D, Kf(4 * kt + ds), Qf(t, ds), (Cm(t) if cinit else 0) if ds == 0 else D))
    return mf
def pv_block(t, sb, first=False):
    return [mfma16(Oacc(t, dt), Vf(dt), PB[sb], 0 if first else Oacc(t, dt)) for dt in range(8)]
def E(sb, i): return valu("v_exp_f32", SB[sb][i], SB[sb][i])
def AD(t, sb, i): return valu("v_add_f32", Lr(t), Lr(t), SB[sb][i])
def CV(sb, k): return valu("v_cvt_pk_bf16_f32", PB[sb][k], SB[sb][2 * k], SB[sb][2 * k + 1])
def sm_half(t, sb, h):
    o = 4 * h
    return {0: [AD(t, sb, o)], 1: [E(sb, o + 1)], 2: [AD(t, sb, o + 1), CV(sb, 2 * h)], 3: [E(sb, o + 2)],
            4: [AD(t, sb, o + 2)], 5: [E(sb, o + 3)], 6: [AD(t, sb, o + 3), CV(sb, 2 * h + 1)]}

def period(j, first=False, exit_label=None):
    out = []
    slot_cur = (j - 1) & 3
    slot_nxt = j & 3
    dm = []
    if not first:
        dm = dma_kv("K", sWld, slot_cur * 8 * KB, sKoff) + dma_kv("V", sWld, 32 * KB + slot_cur * 8 * KB, sKoff)
    for hs in range(2 * NT):
        t = hs >> 1
        sb = (j + t) & 1
        tn = (t + 1) % NT
        if hs % 2 == 0:
            mf = qk_block(tn, sb ^ 1)
            gaps = sm_half(t, sb, 1)
            gaps[7] = [E(sb ^ 1, 0)]
        else:
            mf = pv_block(t, sb, first)
            gaps = sm_half(tn, sb ^ 1, 0)
            gaps[7] = [E(sb ^ 1, 4)]
        def add(g, ops): gaps.setdefault(g, []).extend(ops)
        if hs == 0 and not first:
            for g in range(8): add(g, [read_v(4 + (g >> 1), g & 1, vVr, slot_cur * 8 * KB)])
        if hs == 2 * NT - 1:
            for g in range(8): add(g, [read_v(g >> 1, g & 1, vVr, slot_nxt * 8 * KB)])
        if hs in (2 * NT - 4, 2 * NT - 3):
            for q in range(4): add(2 * q, [read_k(4 * (hs - (2 * NT - 4)) + q, vKr, slot_nxt * 8 * KB)])
        if hs == 1:
            add(7, [wait(vm=24 if first else 16), barrier()])
        if dm and 2 <= hs <= 9:
            p = hs - 2
            base = 0 if p < 4 else 5
            if p % 4 == 0: add(0, dm[base])
            add(4, dm[base + 1 + p % 4])
            if p == 7: add(6, [salu("s_add_u32", sKoff, sKoff, 8192)])
        if exit_label and hs == 2 * NT - 3:
            add(6, [scmp("s_cmp_eq_u32", sCnt, 7)])
        out += inter(mf, gaps)
        if exit_label and hs == 2 * NT - 3:
            out.append(branch("s_cbranch_scc1", exit_label))
    return out

def xgroup_reduce(op, regs, tmps):
    o = []
    for sw in ("v_permlane16_swap_b32", "v_permlane32_swap_b32"):
        for r, t in zip(regs, tmps): o.append(valu("v_mov_b32", t, r))
        o.append(nop(2))
        for r, t in zip(regs, tmps): o.append(permswap(sw, r, t))
        o.append(nop(1))
        for r, t in zip(regs, tmps): o.append(valu(op, r, r, t))
    return o

def build(name):
    P = []
    e = P.append
    e(scmp("s_cmp_ge_u32", "s2", 256)); e(branch("s_cbranch_scc1", "L1_end"))
    e(raw("s_load_dwordx8 s[28:35], s[0:1], 0", "smem"))
    e(raw("s_load_dwordx2 s[36:37], s[0:1], 56", "smem"))
    e(valu("v_lshrrev_b32", vT0, 6, "v0")); e(valu("v_and_b32", vLane, 63, "v0"))
    e(raw(f"v_readfirstlane_b32 {sW}, {vT0}", "valu", rd=[vT0], wr=[sW]))
    e(salu("s_and_b32", sT[0], "s2", 7)); e(salu("s_lshr_b32", sT[1], "s2", 3))
    e(salu("s_and_b32", sB, sT[0], 1)); e(salu("s_lshl_b32", sB, sB, 3)); e(salu("s_and_b32", sT[2], sT[1], 7)); e(salu("s_add_u32", sB, sB, sT[2]))
    e(salu("s_lshr_b32", sHEAD, sT[0], 1)); e(salu("s_lshl_b32", sHEAD, sHEAD, 2)); e(salu("s_lshr_b32", sT[2], sT[1], 3)); e(salu("s_add_u32", sHEAD, sHEAD, sT[2]))
    e(salu("s_lshr_b32", sHH, sW, 1)); e(salu("s_and_b32", sHALF, sW, 1))
    e(salu("s_lshl_b32", sHEAD, sHEAD, 1)); e(salu("s_add_u32", sHEAD, sHEAD, sHH))
    e(salu("s_lshl_b32", sXld, sHALF, 16)); e(salu("s_lshl_b32", sT[0], sHH, 15)); e(salu("s_add_u32", sXld, sXld, sT[0]))
    e(salu("s_lshl_b32", sWld, sHH, 16)); e(salu("s_lshl_b32", sT[0], sHALF, 12)); e(salu("s_add_u32", sWld, sWld, sT[0]))
    e(salu("s_lshl_b32", sSPld, sHH, 14)); e(salu("s_add_u32", sSPld, sSPld, sT[0])); e(salu("s_add_u32", sSPld, sSPld, 128 * KB))
    e(valu("v_lshrrev_b32", vT0, 3, vLane)); e(valu("v_and_b32", vT1, 6, vT0)); e(valu("v_and_b32", vXd, 7, vLane))
    e(valu("v_xor_b32", vXd, vXd, vT1)); e(valu("v_lshlrev_b32", vXd, 4, vXd)); e(valu("v_lshl_add_u32", vXd, vT0, 11, vXd))
    e(salu("s_mul_i32", sT[0], sHALF, 96 * 2048)); e(salu("s_lshl_b32", sT[1], sHH, 14)); e(salu("s_add_u32", sT[0], sT[0], sT[1]))
    e(valu("v_add_u32", vXd, sT[0], vXd))
    e(valu("v_lshrrev_b32", vT0, 4, vLane)); e(valu("v_lshlrev_b32", vT1, 2, vT0)); e(valu("v_and_b32", vWd, 15, vLane))
    e(valu("v_xor_b32", vWd, vWd, vT1)); e(valu("v_lshlrev_b32", vWd, 4, vWd)); e(valu("v_lshl_add_u32", vWd, vT0, 13, vWd))
    e(salu("s_lshl_b32", sT[0], sHALF, 17)); e(valu("v_add_u32", vWd, sT[0], vWd))
    e(valu("v_lshlrev_b32", vT1, 1, vT0)); e(valu("v_and_b32", vKd, 15, vLane)); e(valu("v_xor_b32", vKd, vKd, vT1))
    e(valu("v_lshlrev_b32", vKd, 4, vKd)); e(valu("v_lshl_add_u32", vKd, vT0, 8, vKd))
    e(salu("s_mul_i32", sT[0], sHALF, 0x1080)); e(valu("v_xor_b32", vKd, sT[0], vKd))
    e(raw("s_waitcnt lgkmcnt(0)", "other"))
    e(salu("s_mul_i32", sT[0], sB, 425984))
    e(salu("s_add_u32", SRD_X[0], "s28", sT[0])); e(salu("s_addc_u32", SRD_X[1], "s29", 0)); e(salu("s_mov_b32", SRD_X[2], 425984)); e(salu("s_mov_b32", SRD_X[3], 0x20000))
    e(salu("s_lshl_b32", sT[0], sHEAD, 8))
    e(salu("s_add_u32", SRD_W[0], "s34", sT[0])); e(salu("s_addc_u32", SRD_W[1], "s35", 0)); e(salu("s_sub_u32", SRD_W[2], 8388608, sT[0])); e(salu("s_mov_b32", SRD_W[3], 0x20000))
    e(salu("s_lshl_b32", sT[0], sB, 5)); e(salu("s_add_u32", sT[0], sT[0], sHEAD)); e(salu("s_lshl_b32", sT[0], sT[0], 18))
    e(salu("s_add_u32", SRD_K[0], "s30", sT[0])); e(salu("s_addc_u32", SRD_K[1], "s31", 0)); e(salu("s_mov_b32", SRD_K[2], 262144)); e(salu("s_mov_b32", SRD_K[3], 0x20000))
    e(salu("s_add_u32", SRD_V[0], "s32", sT[0])); e(salu("s_addc_u32", SRD_V[1], "s33", 0)); e(salu("s_mov_b32", SRD_V[2], 262144)); e(salu("s_mov_b32", SRD_V[3], 0x20000))
    e(salu("s_mul_i32", sT[0], sB, 128 * 13 * KB))
    e(salu("s_add_u32", SRD_O[0], "s36", sT[0])); e(salu("s_addc_u32", SRD_O[1], "s37", 0)); e(salu("s_mov_b32", SRD_O[2], 128 * 13 * KB)); e(salu("s_mov_b32", SRD_O[3], 0x20000))
    e(salu("s_mov_b32", sXoff, 0)); e(salu("s_mov_b32", sWoff, 0)); e(salu("s_mov_b32", sKoff, 0))
    flat = lambda gs: [o for g in gs for o in g]
    def kvflat(which, base, off):
        g = dma_kv(which, base, off, sKoff); return g[0] + [nop(1)] + flat(g[1:])
    P += flat(dma_w(0)) + flat(dma_x(0))
    P += kvflat("K", sSPld, 0) + kvflat("V", sSPld, 8 * KB)
    e(salu("s_add_u32", sKoff, sKoff, 8192))
    P += flat(dma_w(1)) + flat(dma_w(2)) + flat(dma_x(1)) + flat(dma_w(3))
    vRho = vT2
    e(valu("v_and_b32", vRho, 15, vLane))
    e(valu("v_and_b32", vT1, 6, vRho)); e(valu("v_xor_b32", vT1, vT1, vT0)); e(valu("v_lshlrev_b32", vXr[0], 4, vT1))
    e(valu("v_and_b32", vT1, 7, vRho)); e(valu("v_lshl_add_u32", vXr[0], vT1, 7, vXr[0]))
    e(valu("v_lshrrev_b32", vT1, 3, vRho)); e(valu("v_lshl_add_u32", vXr[0], vT1, 15, vXr[0]))
    e(salu("s_lshl_b32", sT[0], sHALF, 16)); e(valu("v_add_u32", vXr[0], sT[0], vXr[0]))
    e(valu("v_xor_b32", vXr[1], 64, vXr[0]))
    e(valu("v_lshlrev_b32", vWr[0], 4, vRho)); e(valu("v_lshrrev_b32", vT1, 2, vRho)); e(valu("v_lshl_add_u32", vWr[0], vT1, 8, vWr[0]))
    e(valu("v_lshl_add_u32", vWr[0], vT0, 11, vWr[0]))
    e(salu("s_lshl_b32", sT[1], sHH, 16)); e(valu("v_add_u32", vWr[0], sT[1], vWr[0]))
    for ds in range(1, 4): e(valu("v_xor_b32", vWr[ds], ds * 64, vWr[0]))
    def kappa(dst, rho, tmp):
        e(valu("v_and_b32", dst, 3, rho)); e(valu("v_lshrrev_b32", tmp, 3, rho)); e(valu("v_lshl_add_u32", dst, tmp, 2, dst))
        e(valu("v_and_b32", tmp, 4, rho)); e(valu("v_lshl_add_u32", dst, tmp, 2, dst))
    kappa(vKr[0], vRho, vT1)
    e(valu("v_lshlrev_b32", vKr[0], 8, vKr[0]))
    e(valu("v_and_b32", vT1, 7, vRho)); e(valu("v_lshlrev_b32", vT1, 1, vT1)); e(valu("v_xor_b32", vT1, vT1, vT0))
    e(valu("v_lshl_add_u32", vKr[0], vT1, 4, vKr[0])); e(valu("v_add_u32", vKr[0], sT[1], vKr[0]))
    for ds in range(1, 4): e(valu("v_xor_b32", vKr[ds], ds * 64, vKr[0]))
    e(salu("s_mul_i32", sT[2], sHH, 48 * KB)); e(salu("s_sub_u32", sT[2], 128 * KB, sT[2]))
    for ds in range(4): e(valu("v_add_u32", vKs[ds], sT[2], vKr[ds]))
    e(valu("v_lshrrev_b32", vRho, 2, vLane))
    kappa(vVr[0], vRho, vT1)
    e(valu("v_lshlrev_b32", vVr[0], 8, vVr[0]))
    e(valu("v_and_b32", vT1, 7, vRho)); e(valu("v_lshl_add_u32", vVr[0], vT1, 5, vVr[0]))
    e(valu("v_and_b32", vT1, 3, vLane)); e(valu("v_lshl_add_u32", vVr[0], vT1, 3, vVr[0]))
    e(salu("s_add_u32", sT[1], sT[1], 32 * KB)); e(valu("v_add_u32", vVr[0], sT[1], vVr[0]))
    for dt in range(1, 8): e(valu("v_xor_b32", vVr[dt], dt * 32, vVr[0]))
    e(valu("v_lshlrev_b32", vOst, 4, vLane))
    e(salu("s_mul_i32", sOoff, sHEAD, 52 * KB)); e(salu("s_mul_i32", sT[0], sHALF, 6 * KB)); e(salu("s_add_u32", sOoff, sOoff, sT[0]))
    e(salu("s_mov_b32", sScale[0], f32(QSCALE))); e(salu("s_mov_b32", sScale[1], f32(QSCALE)))
    e(salu("s_mov_b32", sFB, 0)); e(salu("s_mov_b32", sCnt, 0))
    for r in range(ACC0, 256): e(valu("v_mov_b32", V(r), 0))
    e(wait(vm=27)); e(barrier())
    P += reads_w(0) + reads_x(0)

    QL = [label("L1_qloop")]
    for s in range(4):
        reads = reads_w(s + 1) + (reads_x((s + 1) >> 1) if s & 1 else [])
        dmas = dma_w(s) + (dma_x(s >> 1) if s % 2 == 0 else [])
        if s == 3: dmas = dmas + [[salu("s_add_u32", sCnt, sCnt, 1)], [scmp("s_cmp_lt_u32", sCnt, 7)]]
        QL += kstep(s, 15, reads, dmas)
    QL.append(branch("s_cbranch_scc1", "L1_qloop"))
    QT = []
    adv = lambda: [[salu("s_add_u32", sKoff, sKoff, 8192)]]
    QT += kstep(0, 15, reads_w(1), dma_kv("K", sWld, 0, sKoff) + dma_kv("V", sWld, 32 * KB, sKoff) + adv() + dma_kv("K", sWld, 8 * KB, sKoff))
    QT += kstep(1, 16, reads_w(2) + reads_x(1), dma_kv("V", sWld, 40 * KB, sKoff) + adv())
    QT += kstep(2, 16, reads_w(3), dma_kv("K", sWld, 16 * KB, sKoff) + dma_kv("V", sWld, 48 * KB, sKoff) + adv() + dma_kv("K", sWld, 24 * KB, sKoff))
    QT += kstep(3, None, [read_k(f, vKs, 0) for f in range(8)], dma_kv("V", sWld, 56 * KB, sKoff) + adv())
    T = []
    e = T.append
    vVs = [vXd, vWd, vXr[0], vXr[1]] + vWr
    e(salu("s_mul_i32", sT[2], sHH, 48 * KB)); e(salu("s_sub_u32", sT[2], 104 * KB, sT[2]))
    for dt in range(8): e(valu("v_add_u32", vVs[dt], sT[2], vVr[dt]))
    for dt in range(8):
        for kt in range(2): e(read_v(dt, kt, vVs, 0))
    for t in range(NT):
        for ds in range(4):
            src = V(ACC0 + t * 32 + ds * 8, 8)
            for k in range(4): e(valu("v_pk_mul_f32", src[2 * k:2 * k + 2], src[2 * k:2 * k + 2], sScale))
            for k in range(4): e(valu("v_cvt_pk_bf16_f32", Qf(t, ds)[k], src[2 * k], src[2 * k + 1]))
    e(nop(2))
    for t in range(NT):
        for ds in range(4): e(mfma16(Cm(t), Kf(ds), Qf(t, ds), 0 if ds == 0 else Cm(t)))
    for t in range(NT): e(valu("v_mov_b32", Lr(t), 0))
    e(nop(2))
    for t in range(NT): e(valu("v_max3_f32", Cm(t)[0], Cm(t)[0], Cm(t)[1], Cm(t)[2]))
    for t in range(NT): e(valu("v_max_f32", Cm(t)[0], Cm(t)[0], Cm(t)[3]))
    T += xgroup_reduce("v_max_f32", [Cm(t)[0] for t in range(NT)], [Cm(t)[1] for t in range(NT)])
    for t in range(NT):
        for k in (3, 2, 1, 0): e(valu("v_sub_f32", Cm(t)[k], 0, Cm(t)[0]))
    e(salu("s_mov_b32", sCnt, 0))
    e(nop(1))
    T += qk_block(0, 0)
    e(nop(8))
    for i in range(5): e(E(0, i))
    for i in range(4): e(AD(0, 0, i))
    e(CV(0, 0)); e(CV(0, 1))
    A0 = period(0, first=True)
    AL = [label("L1_aloop")] + period(1) + period(2)
    ALa = period(3, exit_label="L1_tail")
    cut = max(i for i, x in enumerate(ALa) if x.kind == "branch") + 1
    ALb = period(4)
    ALb += [salu("s_add_u32", sCnt, sCnt, 1), branch("s_branch", "L1_aloop")]
    TL = [label("L1_tail")]
    sb = (3 + NT - 1) & 1
    g = sm_half(NT - 1, sb, 1)
    for k in (1, 3, 5): TL += g[k]
    TL.append(nop(1))
    for k in (0, 2, 4, 6): TL += g[k]
    TL.append(nop(2))
    TL += pv_block(NT - 1, sb)
    EP = [label("L1_epi")]
    e = EP.append
    tm = [V(vTMP + i) for i in range(NT)]
    EP += xgroup_reduce("v_add_f32", [Lr(t) for t in range(NT)], tm)
    vChk, vChl = V(vTMP + 8), V(vTMP + 9)
    e(valu("v_mov_b32", vChk, 0)); e(valu("v_mov_b32", vChl, 0))
    for t in range(0, NT - 1, 2): e(valu("v_maximum3_f32", vChl, Lr(t), Lr(t + 1), vChl))
    if NT % 2: e(valu("v_maximum3_f32", vChl, Lr(NT - 1), Lr(NT - 1), vChl))
    for t in range(NT): e(valu("v_rcp_f32", tm[t], Lr(t)))
    outs = [PB[0], PB[1], V(vTMP + 12, 4), V(vTMP + 16, 4)]
    n = 0
    for t in range(NT):
        for ds in range(4):
            st = SB[n & 1]; o = outs[n & 3]; n += 1
            if t < 6:
                for k in range(8): e(valu("v_accvgpr_read_b32", st[k], A(t * 32 + ds * 8 + k)))
                src = st
            else:
                src = V(O6 + ds * 8, 8)
            for k in range(4): e(valu("v_maximum3_f32", vChk, f"|{src[2*k]}|", f"|{src[2*k+1]}|", vChk))
            for k in range(8): e(valu("v_mul_f32", st[k], src[k], tm[t]))
            for k in range(4): e(valu("v_cvt_pk_bf16_f32", o[k], st[2 * k], st[2 * k + 1]))
            e(salu("s_add_u32", sT[0], sOoff, (ds * 13 + t) * KB))
            e(bstore(o, vOst, SRD_O, sT[0]))
    e(scmp("s_cmp_lg_u32", sFB, 0)); e(branch("s_cbranch_scc1", "L1_end"))
    e(salu("s_mov_b32", sT[0], 0x7f800000)); e(salu("s_mov_b32", sT[1], f32(2.0 ** 100)))
    e(raw(f"v_cmp_ngt_f32 vcc, {sT[0]}, {vChk}", "valu", rd=[sT[0], vChk], wr=["vcc"]))
    e(raw(f"v_cmp_ngt_f32 {sTmp2}, {sT[1]}, {vChl}", "valu", rd=[sT[1], vChl], wr=[sTmp2]))
    e(nop(4))
    e(raw(f"s_or_b64 vcc, vcc, {sTmp2}", "salu", rd=["vcc", sTmp2], wr=["vcc", "scc"]))
    e(branch("s_cbranch_scc0", "L1_end"))
    FB = []
    e = FB.append
    e(wait(vm=0, lgkm=0))
    e(salu("s_mov_b32", sFB, 1))
    sBuf, sBufO = sXld, sSPld
    e(salu("s_lshl_b32", sT[0], sW, 13)); e(salu("s_add_u32", sT[0], sT[0], 128 * KB))
    e(salu("s_lshl_b32", sT[1], sHALF, 12)); e(salu("s_add_u32", sBuf, sT[0], sT[1])); e(salu("s_xor_b32", sBufO, sBuf, 4096))
    e(salu("s_lshl_b32", sT[1], sHH, 16)); e(salu("s_sub_u32", sT[0], sT[0], sT[1]))
    for ds in range(4): e(valu("v_add_u32", vKr[ds], sT[0], vKr[ds]))
    e(salu("s_sub_u32", sT[0], sT[0], 32 * KB))
    for dt in range(8): e(valu("v_add_u32", vVr[dt], sT[0], vVr[dt]))
    vKd2 = vXd
    e(valu("v_xor_b32", vKd2, 0x1080, vKd))
    def fb_load(srd):
        o = [salu("s_mov_b32", "m0", sBuf), nop(1)] + [dma(vKd, srd, sKoff, p * KB) for p in range(4)]
        o += [salu("s_mov_b32", "m0", sBufO), nop(1)] + [dma(vKd2, srd, sKoff, p * KB) for p in range(4)]
        return o + [wait(vm=0)]
    for t in range(NT): e(valu("v_mov_b32", Lr(t), "0xff800000"))
    e(salu("s_mov_b32", sKoff, 0))
    F1 = [label("L1_fb1")] + fb_load(SRD_K) + [read_k(f, vKr, 0) for f in range(8)] + [wait(lgkm=0)]
    for t in range(NT):
        F1 += qk_block(t, t & 1, cinit=False) + [nop(8)]
        for k in range(4): F1.append(valu("v_max3_f32", Lr(t), Lr(t), SB[t & 1][2 * k], SB[t & 1][2 * k + 1]))
    F1 += [salu("s_add_u32", sKoff, sKoff, 8192), scmp("s_cmp_lt_u32", sKoff, 262144), branch("s_cbranch_scc1", "L1_fb1")]
    F2 = xgroup_reduce("v_max_f32", [Lr(t) for t in range(NT)], tm)
    for t in range(NT):
        for k in range(4): F2.append(valu("v_sub_f32", Cm(t)[k], 0, Lr(t)))
    for t in range(NT): F2.append(valu("v_mov_b32", Lr(t), 0))
    for r in range(192): F2.append(valu("v_accvgpr_write_b32", A(r), 0))
    for r in range(32): F2.append(valu("v_mov_b32", V(O6 + r), 0))
    F2.append(salu("s_mov_b32", sKoff, 0))
    F3 = [label("L1_fb2")] + fb_load(SRD_K) + [read_k(f, vKr, 0) for f in range(8)] + [wait(lgkm=0)]
    F3 += fb_load(SRD_V) + [read_v(dt, kt, vVr, 0) for dt in range(8) for kt in range(2)] + [wait(lgkm=0)]
    for t in range(NT):
        sb = t & 1
        F3 += qk_block(t, sb) + [nop(8)] + [E(sb, i) for i in range(8)] + [nop(1)] + [AD(t, sb, i) for i in range(8)] + [CV(sb, k) for k in range(4)] + [nop(2)] + pv_block(t, sb)
    F3 += [salu("s_add_u32", sKoff, sKoff, 8192), scmp("s_cmp_lt_u32", sKoff, 262144), branch("s_cbranch_scc1", "L1_fb2")]
    F4 = [nop(8), branch("s_branch", "L1_epi")]
    END = [label("L1_end"), raw("s_endpgm")]

    body = AL + ALa + ALb
    trace = P + QL + QL + QT + T + A0 + body + body + AL + ALa[:cut] + TL + EP + FB + F1 + F1 + F2 + F3 + F3 + F4 + EP
    for _ in range(4):
        if auto_lgkm(trace) == 0: break
    else: raise RuntimeError("lgkm not stable")
    probs = check_hazards(expand(trace), name)
    for p in probs: print(p)
    assert not probs
    prog = P + QL + QT + T + A0 + body + TL + EP + FB + F1 + F2 + F3 + F4 + END
    return text(expand(prog))

if __name__ == "__main__":
    s = build("k1")
    print(len(s.splitlines()), "lines")
```

```python
from fw import *
from k1 import inter, KB, NT
sW, sHALF, sB, sNT = S(3), S(5), S(6), S(7)
SRD_O, SRD_W, SRD_C = S(8, 4), S(12, 4), S(16, 4)
sLd, sOoff, sWoff, sCnt = S(40), S(41), S(42), S(43)
sT = [S(46), S(47), S(48), S(49)]
vLane, vT0, vT1, vT2 = V(1), V(2), V(3), V(4)
vOl = V(5)
vWd = [V(6 + i) for i in range(4)]
vWr = [V(10 + i) for i in range(8)]
vSt = V(18)
vRa, vRb = V(19), V(20)
ACC0 = 32
def acc(t, f): return V(ACC0 + f * 28 + t * 4, 4)
def Wset(p, f): return A(192 + 32 * p + 4 * f, 4)
def Oset(p, t): return A(28 * p + 4 * t, 4)

def dma_w(slot):
    g = []
    for p in range(8):
        ops = []
        if p % 4 == 0:
            ops.append(salu("s_add_u32", "m0", sLd, slot * 8 * KB + (p >> 2) * 4096))
            ops.append(salu("s_add_u32", sT[0], sWoff, (p >> 2) * 32768))
        ops.append(dma(vWd[p & 3], SRD_W, sT[0], (p & 3) * KB))
        g.append(ops)
    return g
def load_o(p, t):
    ops = []
    if t % 4 == 0: ops.append(salu("s_add_u32", sT[1], sOoff, (t >> 2) * 4096))
    ops.append(bload(Oset(p, t), vOl, SRD_O, sT[1], (t & 3) * KB))
    return ops
def adv(): return [salu("s_add_u32", sWoff, sWoff, 65536), salu("s_add_u32", sOoff, sOoff, 13 * KB)]
def reads_w(s):
    return [ds_r("ds_read_b64_tr_b16", Wset(s & 1, f)[2 * a:2 * a + 2], vWr[f], (s & 3) * 8 * KB + a * 4096) for f in range(8) for a in range(2)]

def kstep(s, vm, loads=True, reads=True, extra=()):
    mf = [mfma16(acc(t, f), Wset(s & 1, f), Oset(s & 3, t), acc(t, f)) for t in range(NT) for f in range(8)]
    gaps = {}
    add = lambda g, ops: gaps.setdefault(g, []).extend(ops)
    if reads:
        for k, r in enumerate(reads_w(s + 1)): add(k, [r])
    tailops = []
    if loads:
        for p, g in enumerate(dma_w(s & 3)): add(18 + 4 * p, g)
        for t in range(NT - 1): add(8 * t + 8, load_o(s & 3, t))
        tailops = load_o(s & 3, NT - 1) + adv()
    out = [wait(vm=vm, lgkm=0)] + inter(mf, gaps) + tailops + list(extra)
    return out

def build(name):
    P = []; e = P.append
    e(scmp("s_cmp_ge_u32", "s2", 256)); e(branch("s_cbranch_scc1", "L2_end"))
    e(raw("s_load_dwordx4 s[28:31], s[0:1], 32", "smem"))
    e(raw("s_load_dwordx2 s[32:33], s[0:1], 56", "smem"))
    e(valu("v_lshrrev_b32", vT0, 6, "v0")); e(valu("v_and_b32", vLane, 63, "v0"))
    e(raw(f"v_readfirstlane_b32 {sW}, {vT0}", "valu", rd=[vT0], wr=[sW]))
    e(salu("s_and_b32", sT[0], "s2", 7)); e(salu("s_lshr_b32", sT[1], "s2", 3))
    e(salu("s_lshr_b32", sB, sT[0], 1)); e(salu("s_lshl_b32", sB, sB, 2)); e(salu("s_and_b32", sT[2], sT[1], 3)); e(salu("s_add_u32", sB, sB, sT[2]))
    e(salu("s_lshr_b32", sHALF, sT[1], 2)); e(salu("s_and_b32", sHALF, sHALF, 1))
    e(salu("s_and_b32", sNT, sT[0], 1)); e(salu("s_lshl_b32", sNT, sNT, 2)); e(salu("s_lshr_b32", sT[2], sT[1], 3)); e(salu("s_add_u32", sNT, sNT, sT[2]))
    e(salu("s_lshl_b32", sLd, sW, 15))
    e(valu("v_lshlrev_b32", vOl, 4, vLane))
    e(valu("v_lshrrev_b32", vT0, 4, vLane)); e(valu("v_lshlrev_b32", vT1, 1, vT0)); e(valu("v_and_b32", vT2, 15, vLane))
    e(valu("v_xor_b32", vT2, vT2, vT1)); e(valu("v_lshlrev_b32", vT2, 4, vT2)); e(valu("v_lshl_add_u32", vWd[0], vT0, 11, vT2))
    e(valu("v_xor_b32", vWd[1], 128, vWd[0])); e(valu("v_add_u32", vWd[1], 7168, vWd[1]))
    e(valu("v_add_u32", vWd[2], 2 * 7168, vWd[0])); e(valu("v_add_u32", vWd[3], 2 * 7168, vWd[1]))
    e(raw("s_waitcnt lgkmcnt(0)", "other"))
    e(salu("s_mul_i32", sT[0], sB, 128 * 13 * KB))
    e(salu("s_add_u32", SRD_O[0], "s32", sT[0])); e(salu("s_addc_u32", SRD_O[1], "s33", 0)); e(salu("s_mov_b32", SRD_O[2], 128 * 13 * KB)); e(salu("s_mov_b32", SRD_O[3], 0x20000))
    e(salu("s_lshl_b32", sT[0], sNT, 8))
    e(salu("s_add_u32", SRD_W[0], "s28", sT[0])); e(salu("s_addc_u32", SRD_W[1], "s29", 0)); e(salu("s_sub_u32", SRD_W[2], 8388608, sT[0])); e(salu("s_mov_b32", SRD_W[3], 0x20000))
    e(salu("s_mul_i32", sT[0], sB, 425984))
    e(salu("s_add_u32", SRD_C[0], "s30", sT[0])); e(salu("s_addc_u32", SRD_C[1], "s31", 0)); e(salu("s_mov_b32", SRD_C[2], 425984)); e(salu("s_mov_b32", SRD_C[3], 0x20000))
    e(salu("s_lshl_b32", sWoff, sW, 21))
    e(salu("s_mul_i32", sOoff, sW, 32 * 13 * KB)); e(salu("s_mul_i32", sT[0], sHALF, 6 * KB)); e(salu("s_add_u32", sOoff, sOoff, sT[0]))
    for s in range(4):
        for g in dma_w(s): P += g
        for t in range(NT): P += load_o(s, t)
        P += adv()
    e(valu("v_lshrrev_b32", vT1, 2, vLane)); e(valu("v_lshlrev_b32", vWr[0], 8, vT1))
    e(valu("v_and_b32", vT1, 7, vT1)); e(valu("v_lshl_add_u32", vWr[0], vT1, 5, vWr[0]))
    e(valu("v_and_b32", vT1, 3, vLane)); e(valu("v_lshl_add_u32", vWr[0], vT1, 3, vWr[0]))
    e(valu("v_add_u32", vWr[0], sLd, vWr[0]))
    for f in range(1, 8): e(valu("v_xor_b32", vWr[f], f * 32, vWr[0]))
    e(valu("v_and_b32", vT1, 15, vLane)); e(valu("v_lshlrev_b32", vSt, 11, vT1))
    e(valu("v_and_b32", vT1, 1, vT0)); e(valu("v_lshl_add_u32", vSt, vT1, 5, vSt))
    e(valu("v_lshrrev_b32", vT1, 1, vT0)); e(valu("v_lshl_add_u32", vSt, vT1, 4, vSt))
    e(salu("s_mul_i32", sT[0], sHALF, 96 * 2048)); e(salu("s_lshl_b32", sT[1], sNT, 8)); e(salu("s_add_u32", sT[0], sT[0], sT[1]))
    e(salu("s_lshl_b32", sT[1], sW, 6)); e(salu("s_add_u32", sT[0], sT[0], sT[1]))
    e(valu("v_add_u32", vSt, sT[0], vSt))
    for r in range(ACC0, 256): e(valu("v_mov_b32", V(r), 0))
    e(salu("s_mov_b32", sCnt, 0))
    e(wait(vm=45))
    P += reads_w(0)
    L = [label("L2_loop")]
    for s in range(4):
        L += kstep(s, 30, extra=[salu("s_add_u32", sCnt, sCnt, 1), scmp("s_cmp_lt_u32", sCnt, 7), branch("s_cbranch_scc1", "L2_loop")] if s == 3 else ())
    T = kstep(0, 30, loads=False) + kstep(1, 15, loads=False) + kstep(2, 0, loads=False) + kstep(3, None, loads=False, reads=False)
    Rd = []
    e = Rd.append
    e(valu("v_add_u32", vRa, sLd, vOl))
    e(salu("s_xor_b32", sT[0], sLd, 2 << 15)); e(valu("v_add_u32", vRb, sT[0], vOl))
    e(nop(8))
    variants = []
    for w in range(4):
        o = [label(f"L2_red{w}")]
        hi, lo = w >> 1, w & 1
        keep = [4 * hi + k for k in range(4)]; send = [4 * (1 - hi) + k for k in range(4)]
        for i, f in enumerate(send):
            for t in range(NT): o.append(ds_w("ds_write_b128", vRa, acc(t, f), (i * NT + t) * KB))
        o += [wait(lgkm=0), barrier()]
        for i, f in enumerate(keep):
            for t in range(NT): o.append(ds_r("ds_read_b128", acc(t, send[i]), vRb, (i * NT + t) * KB))
        for i, f in enumerate(keep):
            for t in range(NT):
                for k in range(2): o.append(valu("v_pk_add_f32", acc(t, f)[2 * k:2 * k + 2], acc(t, f)[2 * k:2 * k + 2], acc(t, send[i])[2 * k:2 * k + 2]))
        o += [wait(lgkm=0), barrier()]
        keep2 = keep[2 * lo:2 * lo + 2]; send2 = keep[2 * (1 - lo):2 * (1 - lo) + 2]
        for i, f in enumerate(send2):
            for t in range(NT): o.append(ds_w("ds_write_b128", vRa, acc(t, f), (i * NT + t) * KB))
        o.append(salu("s_xor_b32", sT[0], sLd, 1 << 15)); o.append(valu("v_add_u32", vRb, sT[0], vOl))
        o += [wait(lgkm=0), barrier()]
        for i, f in enumerate(keep2):
            for t in range(NT): o.append(ds_r("ds_read_b128", acc(t, send2[i]), vRb, (i * NT + t) * KB))
        for t in range(NT):
            dst = acc(t, send[0])
            for i, f in enumerate(keep2):
                for k in range(2): o.append(valu("v_pk_add_f32", acc(t, f)[2 * k:2 * k + 2], acc(t, f)[2 * k:2 * k + 2], acc(t, send2[i])[2 * k:2 * k + 2]))
            for i, f in enumerate(keep2):
                for k in range(2): o.append(valu("v_cvt_pk_bf16_f32", dst[2 * i + k], acc(t, f)[2 * k], acc(t, f)[2 * k + 1]))
            o.append(nop(2))
            o.append(permswap("v_permlane16_swap_b32", dst[0], dst[2])); o.append(permswap("v_permlane16_swap_b32", dst[1], dst[3]))
            o.append(salu("s_mov_b32", sT[0], t * 32768))
            o.append(bstore(dst, vSt, SRD_C, sT[0]))
        o.append(raw("s_endpgm"))
        variants.append(o)
    for w in range(1, 4):
        e(scmp("s_cmp_eq_u32", sW, w)); e(branch("s_cbranch_scc1", f"L2_red{w}"))
    END = [label("L2_end"), raw("s_endpgm")]
    for v in variants:
        trace = P + L + L + T + Rd + v
        for _ in range(4):
            if auto_lgkm(trace) == 0: break
        else: raise RuntimeError("lgkm not stable")
    for v in variants:
        probs = check_hazards(expand(P + L + L + T + Rd + v), name)
        for p in probs: print(p)
        assert not probs
    prog = P + L + T + Rd + sum(variants, []) + END
    return text(expand(prog))
if __name__ == "__main__":
    print(len(build("k2").splitlines()))
```

```python
import sys, importlib
sys.path.insert(0, "gen")
import k1, k2
HEAD = """; Fused MHA block (Q-projection + cached attention + output projection) for gfx950.
; @launch kernel=attn_kernel grid=(256,1,1) block=(256,1,1) lds=163840
; @launch kernel=oproj_kernel grid=(256,1,1) block=(256,1,1) lds=131072
.amdgcn_target "amdgcn-amd-amdhsa--gfx950"
"""
def khead(n): return f".text\n.globl {n}\n.p2align 8\n.type {n},@function\n{n}:\n"
def desc(n): return f""".section .rodata,"a"
.p2align 6
.amdhsa_kernel {n}
  .amdhsa_next_free_vgpr 512
  .amdhsa_next_free_sgpr 102
  .amdhsa_accum_offset 256
  .amdhsa_group_segment_fixed_size 0
  .amdhsa_kernarg_size 64
  .amdhsa_user_sgpr_count 2
  .amdhsa_user_sgpr_kernarg_segment_ptr 1
  .amdhsa_system_sgpr_workgroup_id_x 1
.end_amdhsa_kernel
"""
out = sys.argv[1] if len(sys.argv) > 1 else "standalone__mha_block_cached__near_ridge.s"
s = HEAD + khead("attn_kernel") + k1.build("k1") + khead("oproj_kernel") + k2.build("k2") + desc("attn_kernel") + desc("oproj_kernel")
open(out, "w").write(s)
print("wrote", out, len(s), "bytes")
```

```python
import re

def R(pre, lo, n=1):
    return [f"{pre}{lo+i}" for i in range(n)]
def rng(pre, lo, n):
    return f"{pre}{lo}" if n == 1 else f"{pre}[{lo}:{lo+n-1}]"

class Reg:
    def __init__(self, f, b, n=1): self.f, self.b, self.n = f, b, n
    def __str__(self): return rng(self.f, self.b, self.n)
    def regs(self): return R(self.f, self.b, self.n)
    def __getitem__(self, i):
        if isinstance(i, slice):
            st = i.start or 0; en = i.stop if i.stop is not None else self.n
            assert 0 <= st < en <= self.n, (st, en, self.n)
            return Reg(self.f, self.b + st, en - st)
        assert 0 <= i < self.n, (i, self.n)
        return Reg(self.f, self.b + i, 1)
def V(b, n=1): return Reg('v', b, n)
def A(b, n=1): return Reg('a', b, n)
def S(b, n=1): return Reg('s', b, n)

def regs_of(x):
    if isinstance(x, Reg): return x.regs()
    if isinstance(x, str):
        if x in ("vcc", "exec", "m0", "scc"): return [x]
        m = re.fullmatch(r"-?\|?([vas])(\d+)\|?", x)
        if m: return [m.group(1) + m.group(2)]
        m = re.fullmatch(r"([vas])\[(\d+):(\d+)\]", x)
        if m: return R(m.group(1), int(m.group(2)), int(m.group(3)) - int(m.group(2)) + 1)
    return []

class I:
    __slots__ = ("text", "kind", "rd", "wr", "post_lgkm", "pre_lgkm", "mf", "nstates", "comment")
    def __init__(self, text, kind, rd=(), wr=(), mf=None, nstates=1):
        self.text, self.kind = text, kind
        self.rd = set(); self.wr = set()
        for x in rd: self.rd.update(regs_of(x))
        for x in wr: self.wr.update(regs_of(x))
        self.post_lgkm = None; self.pre_lgkm = None
        self.mf = mf
        self.nstates = nstates
    def __repr__(self): return self.text

def mfma16(D, Aop, Bop, C):
    c = C if isinstance(C, Reg) else None
    return I(f"v_mfma_f32_16x16x32_bf16 {D}, {Aop}, {Bop}, {C}", "mfma", rd=[Aop, Bop] + ([c] if c else []), wr=[D],
             mf=dict(A=set(Aop.regs()), B=set(Bop.regs()), C=set(c.regs()) if c else set(), D=set(D.regs()), passes=4))
def valu(op, dst, *src, extra="", rmw=False, wr_extra=(), rd_extra=()):
    t = f"{op} {dst}, " + ", ".join(str(s) for s in src) + (" " + extra if extra else "")
    kind = "trans" if op.split("_e")[0] in ("v_exp_f32", "v_rcp_f32", "v_log_f32", "v_rsq_f32") else "valu"
    rd = list(src) + ([dst] if rmw else []) + list(rd_extra)
    return I(t, kind, rd=rd, wr=[dst] + list(wr_extra))
def permswap(op, a, b):
    return I(f"{op} {a}, {b}", "perm", rd=[a, b], wr=[a, b])
def salu(op, dst, *src):
    t = f"{op} {dst}, " + ", ".join(str(s) for s in src)
    return I(t, "salu", rd=list(src), wr=[dst, "scc"])
def scmp(op, a, b):
    return I(f"{op} {a}, {b}", "salu", rd=[a, b], wr=["scc"])
def ds_r(op, dst, addr, off):
    assert 0 <= off < 65536, off
    return I(f"{op} {dst}, {addr} offset:{off}", "lds_r", rd=[addr], wr=[dst])
def ds_w(op, addr, src, off):
    assert 0 <= off < 65536, off
    return I(f"{op} {addr}, {src} offset:{off}", "lds_w", rd=[addr, src])
def dma(voff, srd, soff, off=0, flags=""):
    assert 0 <= off < 4096
    return I(f"buffer_load_dwordx4 {voff}, {srd}, {soff} offen offset:{off}{(' ' + flags) if flags else ''} lds", "dma", rd=[voff, srd, soff, "m0"])
def bload(dst, voff, srd, soff, off=0, flags=""):
    assert 0 <= off < 4096
    op = {1: "dword", 2: "dwordx2", 4: "dwordx4"}[dst.n]
    return I(f"buffer_load_{op} {dst}, {voff}, {srd}, {soff} offen offset:{off}{(' ' + flags) if flags else ''}", "vmem_l", rd=[voff, srd, soff], wr=[dst])
def bstore(src, voff, srd, soff, off=0, flags=""):
    assert 0 <= off < 4096
    op = {1: "dword", 2: "dwordx2", 4: "dwordx4"}[src.n]
    return I(f"buffer_store_{op} {src}, {voff}, {srd}, {soff} offen offset:{off}{(' ' + flags) if flags else ''}", "vmem_s", rd=[src, voff, srd, soff])
def wait(vm=None, lgkm=None):
    t = "s_waitcnt" + (f" vmcnt({vm})" if vm is not None else "") + (f" lgkmcnt({lgkm})" if lgkm is not None else "")
    i = I(t, "wait"); i.mf = dict(vm=vm, lgkm=lgkm); return i
def nop(n):
    assert 1 <= n <= 16
    return I(f"s_nop {n-1}", "nop", nstates=n)
def barrier(): return I("s_barrier", "barrier")
def label(n): return I(f"{n}:", "label", nstates=0)
def branch(op, tgt): return I(f"{op} {tgt}", "branch", rd=["scc", "vcc"])
def raw(t, kind="other", rd=(), wr=()): return I(t, kind, rd=rd, wr=wr)
def comment(t): return I("; " + t, "label", nstates=0)

def auto_lgkm(trace):
    changes = 0
    pend = []
    last_mfma = None
    for idx, ins in enumerate(trace):
        def apply(n):
            nonlocal pend
            if n is not None and len(pend) > n: pend = pend[len(pend) - n:] if n else []
        apply(ins.pre_lgkm)
        if ins.kind == "wait": apply(ins.mf["lgkm"])
        touched = ins.rd | ins.wr
        need = -1
        for k, (ti, rg) in enumerate(pend):
            if rg & touched: need = k
        if need >= 0:
            ti = pend[need][0]
            if last_mfma is not None and last_mfma > ti and all(trace[q].kind not in ("label", "branch") or trace[q].text.startswith(";") for q in range(last_mfma, idx)):
                n = sum(1 for (t2, _) in pend[need + 1:] if t2 < last_mfma)
                q = trace[last_mfma]
                if q.post_lgkm is None or q.post_lgkm > n: q.post_lgkm = n; changes += 1
            else:
                n = len(pend) - need - 1
                if ins.pre_lgkm is None or ins.pre_lgkm > n: ins.pre_lgkm = n; changes += 1
            pend = pend[need + 1:]
        if ins.kind in ("lds_r", "lds_w") and len(pend) >= 15:
            if last_mfma is not None and last_mfma > pend[-1][0] and all(trace[q].kind not in ("label", "branch") or trace[q].text.startswith(";") for q in range(last_mfma, idx)):
                q = trace[last_mfma]
                if q.post_lgkm is None or q.post_lgkm > 8: q.post_lgkm = 8; changes += 1
            else:
                if ins.pre_lgkm is None or ins.pre_lgkm > 8: ins.pre_lgkm = 8; changes += 1
            pend = pend[-8:]
        if ins.kind == "lds_r": pend.append((idx, set(ins.wr)))
        elif ins.kind == "lds_w": pend.append((idx, set()))
        if ins.kind == "mfma": last_mfma = idx
        apply(ins.post_lgkm)
    return changes

def expand(seq):
    out = []
    for ins in seq:
        if ins.pre_lgkm is not None: out.append(wait(lgkm=ins.pre_lgkm))
        out.append(ins)
        if ins.post_lgkm is not None: out.append(wait(lgkm=ins.post_lgkm))
    return out

VALUK = ("valu", "trans", "perm")
def check_hazards(trace, name=""):
    probs = []
    pos = []; p = 0
    for ins in trace:
        pos.append(p); p += ins.nstates
    n = len(trace)
    def dist(i, j):
        return pos[j] - pos[i] - trace[i].nstates
    for i, a in enumerate(trace):
        if a.kind in ("label", "nop", "wait", "barrier", "branch"): continue
        for j in range(i + 1, min(n, i + 40)):
            b = trace[j]
            d = dist(i, j)
            if d >= 20: break
            need = 0; why = ""
            if a.kind == "mfma":
                D = a.mf["D"]
                if b.kind == "mfma":
                    if D & (b.mf["A"] | b.mf["B"]): need, why = 8, "mfma D->A/B"
                    elif D & b.mf["C"] and b.mf["C"] != D: need, why = 6, "mfma D->C partial"
                elif b.kind in VALUK + ("lds_r", "lds_w", "vmem_l", "vmem_s", "dma"):
                    if D & (b.rd | b.wr): need, why = 8, "mfma D->valu/mem"
                if b.kind in VALUK and a.mf["C"] & b.wr: need, why = max(need, 3), why + " srcC WAR"
            if a.kind in VALUK:
                vw = {r for r in a.wr if r[0] in "va" and r != "vcc"}
                sw = {r for r in a.wr if r[0] == "s" or r == "vcc"}
                if b.kind == "mfma" and vw & b.rd: need, why = max(need, 2), "valu->mfma"
                if b.kind == "perm" and vw & b.rd: need, why = max(need, 2), "valu->perm"
                if a.kind == "trans" and b.kind in ("valu", "perm") and vw & b.rd: need, why = max(need, 1), "trans->valu"
                if ("readfirstlane" in b.text or "readlane" in b.text) and vw & b.rd: need, why = max(need, 1), "valu->readlane"
                if sw & b.rd and b.kind in ("vmem_l", "vmem_s", "dma"): need, why = max(need, 5), "valu sgpr->vmem"
                if sw & b.rd and b.kind in VALUK: need, why = max(need, 2), "valu sgpr->valu"
            if a.kind == "salu" and "m0" in a.wr and b.kind == "dma": need, why = max(need, 1), "m0->dma"
            if a.kind == "vmem_s" and "x4" in a.text and b.kind in VALUK and (a.rd & b.wr): need, why = max(need, 2), "store data WAR"
            if need > d:
                probs.append(f"{name}: hazard {why}: need {need} have {d}:\n    {a.text}\n    {b.text}")
    return probs

def text(seq):
    out = []
    for ins in seq:
        out.append(ins.text if ins.kind == "label" and not ins.text.startswith(";") else "  " + ins.text)
    return "\n".join(out) + "\n"

class Stamps:
    def __init__(self, on, base=60, n=10): self.on, self.base, self.n, self.k = on, base, n, 0
    def __call__(self):
        if not self.on: return []
        k = self.k; self.k += 1; assert k < self.n
        return [raw(f"s_memrealtime s[{self.base+2*k}:{self.base+2*k+1}]", "smem"), raw(f"s_memtime s[{self.base+2*self.n+2*k}:{self.base+2*self.n+2*k+1}]", "smem")]
    def dump(self, wsreg, wave_sgpr, off):
        if not self.on: return []
        o = [raw("s_waitcnt vmcnt(0) lgkmcnt(0)", "other")] + self() + [raw("s_waitcnt lgkmcnt(0)", "other")]
        o.append(raw(f"s_lshl_b32 s58, s2, 2", "salu")); o.append(raw(f"s_add_u32 s58, s58, {wave_sgpr}", "salu"))
        o.append(raw(f"s_mul_i32 s58, s58, {self.n*16}", "salu")); o.append(raw(f"s_add_u32 s58, s58, {off}", "salu"))
        o.append(raw("v_mov_b32 v2, s58", "other")); o.append(raw("s_mov_b64 exec, 1", "other"))
        for i in range(2 * self.n):
            o += [raw(f"v_mov_b32 v4, s{self.base+2*i}", "other"), raw(f"v_mov_b32 v5, s{self.base+2*i+1}", "other"),
                  raw(f"global_store_dwordx2 v2, v[4:5], {wsreg} offset:{8*i}", "other"), raw("s_nop 1", "other")]
        o.append(raw("s_waitcnt vmcnt(0)", "other"))
        return o
```

```python
from fw import *
import struct, os
OPT = dict(kv.split('=') for kv in os.environ.get('K1OPT', '').split(',') if kv)
def f32(x): return "0x%08x" % struct.unpack("<I", struct.pack("<f", x))[0]
KB = 1024
NT = 7
QSCALE = 1.4426950408889634 * (128 ** -0.5)

sW, sHH, sHALF, sB, sHEAD = S(3), S(4), S(5), S(6), S(7)
SRD_X, SRD_W, SRD_K, SRD_V, SRD_O = S(8, 4), S(12, 4), S(16, 4), S(20, 4), S(24, 4)
sXld, sWld, sSPld = S(40), S(41), S(42)
sXoff, sWoff, sKoff = S(43), S(44), S(45)
sT = [S(46), S(47), S(48), S(49)]
sCnt, sFB = S(50), S(51)
sScale = S(52, 2)
sOoff = S(54)
sKlin, sRot = S(55), S(39)
def kadv(): return [salu('s_add_u32', sKlin, sKlin, 8192), salu('s_xor_b32', sKoff, sKlin, sRot)]
sTmp2 = S(56, 2)

vLane, vT0, vT1, vT2 = V(1), V(2), V(3), V(29)
vXd, vWd, vKd = V(4), V(5), V(6)
vXr = [V(7), V(8)]
vWr = [V(9 + i) for i in range(4)]
vKr = [V(13 + i) for i in range(4)]
vVr = [V(17 + i) for i in range(8)]
vKs = [V(25 + i) for i in range(4)]
vOst = V(30)
ACC0 = 32
def acc(t, f): return V(ACC0 + t * 32 + f * 4, 4)
def Qf(t, ds): return V(ACC0 + t * 16 + ds * 4, 4)
FREE0 = ACC0 + 112
O6 = FREE0
SB = [V(FREE0 + 32, 8), V(FREE0 + 40, 8)]
PB = [V(FREE0 + 48, 4), V(FREE0 + 52, 4)]
def Cm(t): return V(FREE0 + 56 + 4 * t, 4)
def Lr(t): return V(FREE0 + 84 + t)
vTMP = FREE0 + 92
def Oacc(t, dt): return A(t * 32 + dt * 4, 4) if t < 6 else V(O6 + dt * 4, 4)
def Kf(f): return A(192 + 4 * f, 4)
def Vf(dt): return A(224 + 4 * dt, 4)
def Wset(p, f): return A(192 + 32 * p + 4 * f, 4)
def Xset(p, t): return A(28 * p + 4 * t, 4)

def inter(mf, gaps):
    out = []
    assert all(0 <= k < len(mf) for k in gaps), (sorted(gaps), len(mf))
    order = lambda i: 0 if i.kind in ("salu", "wait", "barrier", "branch", "label") else (1 if i.kind in ("lds_r", "lds_w", "dma", "vmem_l", "vmem_s") else 2)
    for k, m in enumerate(mf):
        out.append(m)
        out.extend(sorted(gaps.get(k, []), key=order))
    return out

def wchunk(s): return (1 + 4 * (s & 1) + 2 * ((s >> 1) & 1)) * 8 * KB

def dma_w(s):
    g = []
    for p in range(4):
        ops = []
        if p == 0: ops.append(salu("s_add_u32", "m0", sWld, wchunk(s)))
        ops.append(salu("s_add_u32", sT[p & 1], sWoff, p * 31744))
        ops.append(dma(vWd, SRD_W, sT[p & 1], p * KB))
        g.append(ops)
    g.append([salu("s_add_u32", sWoff, sWoff, 262144)])
    return g
def dma_x(par):
    g = []
    for t in range(7):
        ops = []
        if t in (0, 4): ops.append(salu("s_add_u32", "m0", sXld, par * 16 * KB + (t >> 2) * 4096))
        ops.append(salu("s_add_u32", sT[t & 1], sXoff, t * 32768 - (t & 3) * KB))
        ops.append(dma(vXd, SRD_X, sT[t & 1], (t & 3) * KB))
        g.append(ops)
    g.append([salu("s_add_u32", sXoff, sXoff, 128)])
    return g
def dma_kv(which, base, off, soff):
    srd = SRD_K if which == "K" else SRD_V
    g = [[salu("s_add_u32", "m0", base, off)]]
    for p in range(4): g.append([dma(vKd, srd, soff, p * KB, OPT.get("kvflag", "nt").replace("none", ""))])
    return g

def reads_w(s):
    r = []
    for f in range(8):
        ds, T = f >> 1, f & 1
        for a in range(2):
            r.append(ds_r("ds_read_b64_tr_b16", Wset(s & 1, f)[2 * a:2 * a + 2], vWr[ds], wchunk(s) + a * KB + 8 * T))
    return r
def reads_x(a):
    r = []
    for sp in range(2):
        for t in range(NT):
            r.append(ds_r("ds_read_b128", Xset((a & 1) * 2 + sp, t), vXr[sp], (a & 1) * 16 * KB + t * KB))
    return r
def read_k(f, addr, off): return ds_r("ds_read_b128", Kf(f), addr[f & 3], off + (f >> 2) * 2048)
def read_v(dt, kt, addr, off): return ds_r("ds_read_b64_tr_b16", Vf(dt)[2 * kt:2 * kt + 2], addr[dt], off + kt * 2048)

def kstep(s, vm, reads, dmas):
    mf = []
    a = s >> 1
    for t in range(NT):
        for f in range(8):
            mf.append(mfma16(acc(t, f), Wset(s & 1, f), Xset((a & 1) * 2 + (s & 1), t), acc(t, f)))
    gaps = {}
    k = 0
    for r in reads:
        gaps.setdefault(k, []).append(r); k += 1
    k = max(k, 2)
    step = max(1, (len(mf) - 2 - k) // max(1, len(dmas)))
    for g in dmas:
        gaps.setdefault(k, []).extend(g); k += step
    head = [wait(vm=vm, lgkm=0), barrier()]
    return head + inter(mf, gaps)

def qk_block(t, sb, cinit=True):
    mf = []
    for kt in range(2):
        D = SB[sb][4 * kt:4 * kt + 4]
        for ds in range(4):
            mf.append(mfma16(D, Kf(4 * kt + ds), Qf(t, ds), (Cm(t) if cinit else 0) if ds == 0 else D))
    return mf
def pv_block(t, sb, first=False):
    return [mfma16(Oacc(t, dt), Vf(dt), PB[sb], 0 if first else Oacc(t, dt)) for dt in range(8)]
def E(sb, i): return valu("v_exp_f32", SB[sb][i], SB[sb][i])
def AD(t, sb, i): return valu("v_add_f32", Lr(t), Lr(t), SB[sb][i])
def CV(sb, k): return valu("v_cvt_pk_bf16_f32", PB[sb][k], SB[sb][2 * k], SB[sb][2 * k + 1])
def sm_half(t, sb, h):
    o = 4 * h
    return {0: [AD(t, sb, o)], 1: [E(sb, o + 1)], 2: [AD(t, sb, o + 1), CV(sb, 2 * h)], 3: [E(sb, o + 2)],
            4: [AD(t, sb, o + 2)], 5: [E(sb, o + 3)], 6: [AD(t, sb, o + 3), CV(sb, 2 * h + 1)]}

def period(j, first=False, exit_label=None):
    out = []
    slot_cur = (j - 1) & 3
    slot_nxt = j & 3
    dm = []
    if not first:
        dm = dma_kv("K", sWld, slot_cur * 8 * KB, sKoff) + dma_kv("V", sWld, 32 * KB + slot_cur * 8 * KB, sKoff)
    for hs in range(2 * NT):
        t = hs >> 1
        sb = (j + t) & 1
        tn = (t + 1) % NT
        if hs % 2 == 0:
            mf = qk_block(tn, sb ^ 1)
            gaps = sm_half(t, sb, 1)
            gaps[7] = [E(sb ^ 1, 0)]
        else:
            mf = pv_block(t, sb, first)
            gaps = sm_half(tn, sb ^ 1, 0)
            gaps[7] = [E(sb ^ 1, 4)]
        def add(g, ops): gaps.setdefault(g, []).extend(ops)
        if hs == 0 and not first:
            for g in range(8): add(g, [read_v(4 + (g >> 1), g & 1, vVr, slot_cur * 8 * KB)])
        if hs == 2 * NT - 1:
            for g in range(8): add(g, [read_v(g >> 1, g & 1, vVr, slot_nxt * 8 * KB)])
        if hs in (2 * NT - 4, 2 * NT - 3):
            for q in range(4): add(2 * q, [read_k(4 * (hs - (2 * NT - 4)) + q, vKr, slot_nxt * 8 * KB)])
        if hs == 1:
            add(7, [wait(vm=24 if first else 16), barrier()])
        if dm and 2 <= hs <= 9:
            p = hs - 2
            base = 0 if p < 4 else 5
            if p % 4 == 0: add(0, dm[base])
            add(4, dm[base + 1 + p % 4])
            if p == 7: add(6, kadv()[:1]); add(7, kadv()[1:])
        if exit_label and hs == 2 * NT - 3:
            add(6, [scmp("s_cmp_eq_u32", sCnt, 7)])
        out += inter(mf, gaps)
        if exit_label and hs == 2 * NT - 3:
            out.append(branch("s_cbranch_scc1", exit_label))
    return out

def xgroup_reduce(op, regs, tmps):
    o = []
    for sw in ("v_permlane16_swap_b32", "v_permlane32_swap_b32"):
        for r, t in zip(regs, tmps): o.append(valu("v_mov_b32", t, r))
        o.append(nop(2))
        for r, t in zip(regs, tmps): o.append(permswap(sw, r, t))
        o.append(nop(1))
        for r, t in zip(regs, tmps): o.append(valu(op, r, r, t))
    return o

def build(name, stamp=False):
    ST = Stamps(stamp)
    P = []
    e = P.append
    e(scmp("s_cmp_ge_u32", "s2", 256)); e(branch("s_cbranch_scc1", "L1_end"))
    P += ST()
    e(raw("s_load_dwordx8 s[28:35], s[0:1], 0", "smem"))
    e(raw("s_load_dwordx2 s[36:37], s[0:1], 56", "smem"))
    e(valu("v_lshrrev_b32", vT0, 6, "v0")); e(valu("v_and_b32", vLane, 63, "v0"))
    e(raw(f"v_readfirstlane_b32 {sW}, {vT0}", "valu", rd=[vT0], wr=[sW]))
    e(salu("s_and_b32", sT[0], "s2", 7)); e(salu("s_lshr_b32", sT[1], "s2", 3))
    e(salu("s_and_b32", sB, sT[0], 1)); e(salu("s_lshl_b32", sB, sB, 3)); e(salu("s_and_b32", sT[2], sT[1], 7)); e(salu("s_add_u32", sB, sB, sT[2]))
    e(salu("s_lshr_b32", sHEAD, sT[0], 1)); e(salu("s_lshl_b32", sHEAD, sHEAD, 2)); e(salu("s_lshr_b32", sT[2], sT[1], 3)); e(salu("s_add_u32", sHEAD, sHEAD, sT[2]))
    e(salu("s_lshr_b32", sHH, sW, 1)); e(salu("s_and_b32", sHALF, sW, 1))
    e(salu("s_lshl_b32", sHEAD, sHEAD, 1)); e(salu("s_add_u32", sHEAD, sHEAD, sHH))
    e(salu("s_lshl_b32", sXld, sHALF, 16)); e(salu("s_lshl_b32", sT[0], sHH, 15)); e(salu("s_add_u32", sXld, sXld, sT[0]))
    e(salu("s_lshl_b32", sWld, sHH, 16)); e(salu("s_lshl_b32", sT[0], sHALF, 12)); e(salu("s_add_u32", sWld, sWld, sT[0]))
    e(salu("s_lshl_b32", sSPld, sHH, 14)); e(salu("s_add_u32", sSPld, sSPld, sT[0])); e(salu("s_add_u32", sSPld, sSPld, 128 * KB))
    e(valu("v_lshrrev_b32", vT0, 3, vLane)); e(valu("v_and_b32", vT1, 6, vT0)); e(valu("v_and_b32", vXd, 7, vLane))
    e(valu("v_xor_b32", vXd, vXd, vT1)); e(valu("v_lshlrev_b32", vXd, 4, vXd)); e(valu("v_lshl_add_u32", vXd, vT0, 11, vXd))
    e(salu("s_mul_i32", sT[0], sHALF, 96 * 2048)); e(salu("s_lshl_b32", sT[1], sHH, 14)); e(salu("s_add_u32", sT[0], sT[0], sT[1]))
    e(valu("v_add_u32", vXd, sT[0], vXd))
    e(valu("v_lshrrev_b32", vT0, 4, vLane)); e(valu("v_lshlrev_b32", vT1, 2, vT0)); e(valu("v_and_b32", vWd, 15, vLane))
    e(valu("v_xor_b32", vWd, vWd, vT1)); e(valu("v_lshlrev_b32", vWd, 4, vWd)); e(valu("v_lshl_add_u32", vWd, vT0, 13, vWd))
    e(salu("s_lshl_b32", sT[0], sHALF, 17)); e(valu("v_add_u32", vWd, sT[0], vWd))
    e(valu("v_lshlrev_b32", vT1, 1, vT0)); e(valu("v_and_b32", vKd, 15, vLane)); e(valu("v_xor_b32", vKd, vKd, vT1))
    e(valu("v_lshlrev_b32", vKd, 4, vKd)); e(valu("v_lshl_add_u32", vKd, vT0, 8, vKd))
    e(salu("s_mul_i32", sT[0], sHALF, 0x1080)); e(valu("v_xor_b32", vKd, sT[0], vKd))
    if OPT.get("linkv"):
        e(valu("v_lshlrev_b32", vKd, 4, vLane)); e(salu("s_lshl_b32", sT[0], sHALF, 12)); e(valu("v_add_u32", vKd, sT[0], vKd))
    e(raw("s_waitcnt lgkmcnt(0)", "other"))
    e(salu("s_mul_i32", sT[0], sB, 425984))
    e(salu("s_add_u32", SRD_X[0], "s28", sT[0])); e(salu("s_addc_u32", SRD_X[1], "s29", 0)); e(salu("s_mov_b32", SRD_X[2], 425984)); e(salu("s_mov_b32", SRD_X[3], 0x20000))
    e(salu("s_lshl_b32", sT[0], sHEAD, 8))
    e(salu("s_add_u32", SRD_W[0], "s34", sT[0])); e(salu("s_addc_u32", SRD_W[1], "s35", 0)); e(salu("s_sub_u32", SRD_W[2], 8388608, sT[0])); e(salu("s_mov_b32", SRD_W[3], 0x20000))
    e(salu("s_lshl_b32", sT[0], sB, 5)); e(salu("s_add_u32", sT[0], sT[0], sHEAD)); e(salu("s_lshl_b32", sT[0], sT[0], 18))
    e(salu("s_add_u32", SRD_K[0], "s30", sT[0])); e(salu("s_addc_u32", SRD_K[1], "s31", 0)); e(salu("s_mov_b32", SRD_K[2], 262144)); e(salu("s_mov_b32", SRD_K[3], 0x20000))
    e(salu("s_add_u32", SRD_V[0], "s32", sT[0])); e(salu("s_addc_u32", SRD_V[1], "s33", 0)); e(salu("s_mov_b32", SRD_V[2], 262144)); e(salu("s_mov_b32", SRD_V[3], 0x20000))
    e(salu("s_mul_i32", sT[0], sB, 128 * 13 * KB))
    e(salu("s_add_u32", SRD_O[0], "s36", sT[0])); e(salu("s_addc_u32", SRD_O[1], "s37", 0)); e(salu("s_mov_b32", SRD_O[2], 128 * 13 * KB)); e(salu("s_mov_b32", SRD_O[3], 0x20000))
    e(salu("s_mov_b32", sXoff, 0)); e(salu("s_mov_b32", sWoff, 0)); e(salu("s_mov_b32", sKlin, 0))
    if OPT.get("rot", "1") == "1":
        e(salu("s_lshr_b32", sRot, "s2", 3)); e(salu("s_lshl_b32", sT[0], "s2", 2)); e(salu("s_add_u32", sRot, sRot, sT[0]))
        e(salu("s_lshl_b32", sT[0], sHH, 4)); e(salu("s_add_u32", sRot, sRot, sT[0])); e(salu("s_and_b32", sRot, sRot, 31)); e(salu("s_lshl_b32", sRot, sRot, 13))
    else:
        e(salu("s_mov_b32", sRot, 0))
    e(salu("s_mov_b32", sKoff, sRot))
    flat = lambda gs: [o for g in gs for o in g]
    def kvflat(which, base, off):
        g = dma_kv(which, base, off, sKoff); return g[0] + [nop(1)] + flat(g[1:])
    P += flat(dma_w(0)) + flat(dma_x(0))
    P += kvflat("K", sSPld, 0) + kvflat("V", sSPld, 8 * KB)
    P += kadv()
    P += flat(dma_w(1)) + flat(dma_w(2)) + flat(dma_x(1)) + flat(dma_w(3))
    vRho = vT2
    e(valu("v_and_b32", vRho, 15, vLane))
    e(valu("v_and_b32", vT1, 6, vRho)); e(valu("v_xor_b32", vT1, vT1, vT0)); e(valu("v_lshlrev_b32", vXr[0], 4, vT1))
    e(valu("v_and_b32", vT1, 7, vRho)); e(valu("v_lshl_add_u32", vXr[0], vT1, 7, vXr[0]))
    e(valu("v_lshrrev_b32", vT1, 3, vRho)); e(valu("v_lshl_add_u32", vXr[0], vT1, 15, vXr[0]))
    e(salu("s_lshl_b32", sT[0], sHALF, 16)); e(valu("v_add_u32", vXr[0], sT[0], vXr[0]))
    e(valu("v_xor_b32", vXr[1], 64, vXr[0]))
    e(valu("v_lshlrev_b32", vWr[0], 4, vRho)); e(valu("v_lshrrev_b32", vT1, 2, vRho)); e(valu("v_lshl_add_u32", vWr[0], vT1, 8, vWr[0]))
    e(valu("v_lshl_add_u32", vWr[0], vT0, 11, vWr[0]))
    e(salu("s_lshl_b32", sT[1], sHH, 16)); e(valu("v_add_u32", vWr[0], sT[1], vWr[0]))
    for ds in range(1, 4): e(valu("v_xor_b32", vWr[ds], ds * 64, vWr[0]))
    def kappa(dst, rho, tmp):
        e(valu("v_and_b32", dst, 3, rho)); e(valu("v_lshrrev_b32", tmp, 3, rho)); e(valu("v_lshl_add_u32", dst, tmp, 2, dst))
        e(valu("v_and_b32", tmp, 4, rho)); e(valu("v_lshl_add_u32", dst, tmp, 2, dst))
    kappa(vKr[0], vRho, vT1)
    e(valu("v_lshlrev_b32", vKr[0], 8, vKr[0]))
    e(valu("v_and_b32", vT1, 7, vRho)); e(valu("v_lshlrev_b32", vT1, 1, vT1)); e(valu("v_xor_b32", vT1, vT1, vT0))
    e(valu("v_lshl_add_u32", vKr[0], vT1, 4, vKr[0])); e(valu("v_add_u32", vKr[0], sT[1], vKr[0]))
    for ds in range(1, 4): e(valu("v_xor_b32", vKr[ds], ds * 64, vKr[0]))
    e(salu("s_mul_i32", sT[2], sHH, 48 * KB)); e(salu("s_sub_u32", sT[2], 128 * KB, sT[2]))
    for ds in range(4): e(valu("v_add_u32", vKs[ds], sT[2], vKr[ds]))
    e(valu("v_lshrrev_b32", vRho, 2, vLane))
    kappa(vVr[0], vRho, vT1)
    e(valu("v_lshlrev_b32", vVr[0], 8, vVr[0]))
    e(valu("v_and_b32", vT1, 7, vRho)); e(valu("v_lshl_add_u32", vVr[0], vT1, 5, vVr[0]))
    e(valu("v_and_b32", vT1, 3, vLane)); e(valu("v_lshl_add_u32", vVr[0], vT1, 3, vVr[0]))
    e(salu("s_add_u32", sT[1], sT[1], 32 * KB)); e(valu("v_add_u32", vVr[0], sT[1], vVr[0]))
    for dt in range(1, 8): e(valu("v_xor_b32", vVr[dt], dt * 32, vVr[0]))
    e(valu("v_lshlrev_b32", vOst, 4, vLane))
    e(salu("s_mul_i32", sOoff, sHEAD, 52 * KB)); e(salu("s_mul_i32", sT[0], sHALF, 6 * KB)); e(salu("s_add_u32", sOoff, sOoff, sT[0]))
    e(salu("s_mov_b32", sScale[0], f32(QSCALE))); e(salu("s_mov_b32", sScale[1], f32(QSCALE)))
    e(salu("s_mov_b32", sFB, 0)); e(salu("s_mov_b32", sCnt, 0))
    for r in range(ACC0, 256): e(valu("v_mov_b32", V(r), 0))
    e(wait(vm=27)); e(barrier())
    P += ST()
    P += reads_w(0) + reads_x(0)

    QL = [label("L1_qloop")]
    for s in range(4):
        reads = reads_w(s + 1) + (reads_x((s + 1) >> 1) if s & 1 else [])
        dmas = dma_w(s) + (dma_x(s >> 1) if s % 2 == 0 else [])
        if s == 3: dmas = dmas + [[salu("s_add_u32", sCnt, sCnt, 1)], [scmp("s_cmp_lt_u32", sCnt, 7)]]
        QL += kstep(s, 15, reads, dmas)
    QL.append(branch("s_cbranch_scc1", "L1_qloop"))
    QT = ST()
    adv = lambda: [kadv()]
    QT += kstep(0, 15, reads_w(1), dma_kv("K", sWld, 0, sKoff) + dma_kv("V", sWld, 32 * KB, sKoff) + adv() + dma_kv("K", sWld, 8 * KB, sKoff))
    QT += kstep(1, 16, reads_w(2) + reads_x(1), dma_kv("V", sWld, 40 * KB, sKoff) + adv())
    QT += kstep(2, 16, reads_w(3), dma_kv("K", sWld, 16 * KB, sKoff) + dma_kv("V", sWld, 48 * KB, sKoff) + adv() + dma_kv("K", sWld, 24 * KB, sKoff))
    QT += kstep(3, None, [read_k(f, vKs, 0) for f in range(8)], dma_kv("V", sWld, 56 * KB, sKoff) + adv())
    T = ST()
    e = T.append
    vVs = [vXd, vWd, vXr[0], vXr[1]] + vWr
    e(salu("s_mul_i32", sT[2], sHH, 48 * KB)); e(salu("s_sub_u32", sT[2], 104 * KB, sT[2]))
    for dt in range(8): e(valu("v_add_u32", vVs[dt], sT[2], vVr[dt]))
    for dt in range(8):
        for kt in range(2): e(read_v(dt, kt, vVs, 0))
    for t in range(NT):
        for ds in range(4):
            src = V(ACC0 + t * 32 + ds * 8, 8)
            for k in range(4): e(valu("v_pk_mul_f32", src[2 * k:2 * k + 2], src[2 * k:2 * k + 2], sScale))
            for k in range(4): e(valu("v_cvt_pk_bf16_f32", Qf(t, ds)[k], src[2 * k], src[2 * k + 1]))
    e(nop(2))
    for t in range(NT):
        for ds in range(4): e(mfma16(Cm(t), Kf(ds), Qf(t, ds), 0 if ds == 0 else Cm(t)))
    for t in range(NT): e(valu("v_mov_b32", Lr(t), 0))
    e(nop(2))
    for t in range(NT): e(valu("v_max3_f32", Cm(t)[0], Cm(t)[0], Cm(t)[1], Cm(t)[2]))
    for t in range(NT): e(valu("v_max_f32", Cm(t)[0], Cm(t)[0], Cm(t)[3]))
    T += xgroup_reduce("v_max_f32", [Cm(t)[0] for t in range(NT)], [Cm(t)[1] for t in range(NT)])
    for t in range(NT):
        for k in (3, 2, 1, 0): e(valu("v_sub_f32", Cm(t)[k], 0, Cm(t)[0]))
    e(salu("s_mov_b32", sCnt, 0))
    e(nop(1))
    T += qk_block(0, 0)
    e(nop(8))
    for i in range(5): e(E(0, i))
    for i in range(4): e(AD(0, 0, i))
    e(CV(0, 0)); e(CV(0, 1))
    A0 = ST() + period(0, first=True) + ST()
    AL = [label("L1_aloop")] + period(1) + period(2)
    ALa = period(3, exit_label="L1_tail")
    cut = max(i for i, x in enumerate(ALa) if x.kind == "branch") + 1
    ALb = period(4)
    ALb += [salu("s_add_u32", sCnt, sCnt, 1), branch("s_branch", "L1_aloop")]
    TL = [label("L1_tail")] + ST()
    sb = (3 + NT - 1) & 1
    g = sm_half(NT - 1, sb, 1)
    for k in (1, 3, 5): TL += g[k]
    TL.append(nop(1))
    for k in (0, 2, 4, 6): TL += g[k]
    TL.append(nop(2))
    TL += pv_block(NT - 1, sb)
    EP = [label("L1_epi")]
    e = EP.append
    tm = [V(vTMP + i) for i in range(NT)]
    EP += xgroup_reduce("v_add_f32", [Lr(t) for t in range(NT)], tm)
    vChk, vChl = V(vTMP + 8), V(vTMP + 9)
    e(valu("v_mov_b32", vChk, 0)); e(valu("v_mov_b32", vChl, 0))
    for t in range(0, NT - 1, 2): e(valu("v_maximum3_f32", vChl, Lr(t), Lr(t + 1), vChl))
    if NT % 2: e(valu("v_maximum3_f32", vChl, Lr(NT - 1), Lr(NT - 1), vChl))
    for t in range(NT): e(valu("v_rcp_f32", tm[t], Lr(t)))
    outs = [PB[0], PB[1], V(vTMP + 12, 4), V(vTMP + 16, 4)]
    n = 0
    for t in range(NT):
        for ds in range(4):
            st = SB[n & 1]; o = outs[n & 3]; n += 1
            if t < 6:
                for k in range(8): e(valu("v_accvgpr_read_b32", st[k], A(t * 32 + ds * 8 + k)))
                src = st
            else:
                src = V(O6 + ds * 8, 8)
            for k in range(4): e(valu("v_maximum3_f32", vChk, f"|{src[2*k]}|", f"|{src[2*k+1]}|", vChk))
            for k in range(8): e(valu("v_mul_f32", st[k], src[k], tm[t]))
            for k in range(4): e(valu("v_cvt_pk_bf16_f32", o[k], st[2 * k], st[2 * k + 1]))
            e(salu("s_add_u32", sT[0], sOoff, (ds * 13 + t) * KB))
            e(bstore(o, vOst, SRD_O, sT[0]))
    EP += ST()
    EP += ST.dump("s[36:37]", sW, 64 << 20)
    e(scmp("s_cmp_lg_u32", sFB, 0)); e(branch("s_cbranch_scc1", "L1_end"))
    e(salu("s_mov_b32", sT[0], 0x7f800000)); e(salu("s_mov_b32", sT[1], f32(2.0 ** 100)))
    e(raw(f"v_cmp_ngt_f32 vcc, {sT[0]}, {vChk}", "valu", rd=[sT[0], vChk], wr=["vcc"]))
    e(raw(f"v_cmp_ngt_f32 {sTmp2}, {sT[1]}, {vChl}", "valu", rd=[sT[1], vChl], wr=[sTmp2]))
    e(nop(4))
    e(raw(f"s_or_b64 vcc, vcc, {sTmp2}", "salu", rd=["vcc", sTmp2], wr=["vcc", "scc"]))
    e(branch("s_cbranch_scc0", "L1_end"))
    FB = []
    e = FB.append
    e(wait(vm=0, lgkm=0))
    e(salu("s_mov_b32", sFB, 1))
    sBuf, sBufO = sXld, sSPld
    e(salu("s_lshl_b32", sT[0], sW, 13)); e(salu("s_add_u32", sT[0], sT[0], 128 * KB))
    e(salu("s_lshl_b32", sT[1], sHALF, 12)); e(salu("s_add_u32", sBuf, sT[0], sT[1])); e(salu("s_xor_b32", sBufO, sBuf, 4096))
    e(salu("s_lshl_b32", sT[1], sHH, 16)); e(salu("s_sub_u32", sT[0], sT[0], sT[1]))
    for ds in range(4): e(valu("v_add_u32", vKr[ds], sT[0], vKr[ds]))
    e(salu("s_sub_u32", sT[0], sT[0], 32 * KB))
    for dt in range(8): e(valu("v_add_u32", vVr[dt], sT[0], vVr[dt]))
    vKd2 = vXd
    e(valu("v_xor_b32", vKd2, 0x1080, vKd))
    def fb_load(srd):
        o = [salu("s_mov_b32", "m0", sBuf), nop(1)] + [dma(vKd, srd, sKoff, p * KB) for p in range(4)]
        o += [salu("s_mov_b32", "m0", sBufO), nop(1)] + [dma(vKd2, srd, sKoff, p * KB) for p in range(4)]
        return o + [wait(vm=0)]
    for t in range(NT): e(valu("v_mov_b32", Lr(t), "0xff800000"))
    e(salu("s_mov_b32", sKoff, 0))
    F1 = [label("L1_fb1")] + fb_load(SRD_K) + [read_k(f, vKr, 0) for f in range(8)] + [wait(lgkm=0)]
    for t in range(NT):
        F1 += qk_block(t, t & 1, cinit=False) + [nop(8)]
        for k in range(4): F1.append(valu("v_max3_f32", Lr(t), Lr(t), SB[t & 1][2 * k], SB[t & 1][2 * k + 1]))
    F1 += [salu("s_add_u32", sKoff, sKoff, 8192), scmp("s_cmp_lt_u32", sKoff, 262144), branch("s_cbranch_scc1", "L1_fb1")]
    F2 = xgroup_reduce("v_max_f32", [Lr(t) for t in range(NT)], tm)
    for t in range(NT):
        for k in range(4): F2.append(valu("v_sub_f32", Cm(t)[k], 0, Lr(t)))
    for t in range(NT): F2.append(valu("v_mov_b32", Lr(t), 0))
    for r in range(192): F2.append(valu("v_accvgpr_write_b32", A(r), 0))
    for r in range(32): F2.append(valu("v_mov_b32", V(O6 + r), 0))
    F2.append(salu("s_mov_b32", sKoff, 0))
    F3 = [label("L1_fb2")] + fb_load(SRD_K) + [read_k(f, vKr, 0) for f in range(8)] + [wait(lgkm=0)]
    F3 += fb_load(SRD_V) + [read_v(dt, kt, vVr, 0) for dt in range(8) for kt in range(2)] + [wait(lgkm=0)]
    for t in range(NT):
        sb = t & 1
        F3 += qk_block(t, sb) + [nop(8)] + [E(sb, i) for i in range(8)] + [nop(1)] + [AD(t, sb, i) for i in range(8)] + [CV(sb, k) for k in range(4)] + [nop(2)] + pv_block(t, sb)
    F3 += [salu("s_add_u32", sKoff, sKoff, 8192), scmp("s_cmp_lt_u32", sKoff, 262144), branch("s_cbranch_scc1", "L1_fb2")]
    F4 = [nop(8), branch("s_branch", "L1_epi")]
    END = [label("L1_end"), raw("s_endpgm")]

    body = AL + ALa + ALb
    trace = P + QL + QL + QT + T + A0 + body + body + AL + ALa[:cut] + TL + EP + FB + F1 + F1 + F2 + F3 + F3 + F4 + EP
    for _ in range(4):
        if auto_lgkm(trace) == 0: break
    else: raise RuntimeError("lgkm not stable")
    probs = check_hazards(expand(trace), name)
    for p in probs: print(p)
    assert not probs
    prog = P + QL + QT + T + A0 + body + TL + EP + FB + F1 + F2 + F3 + F4 + END
    return text(expand(prog))

if __name__ == "__main__":
    s = build("k1")
    print(len(s.splitlines()), "lines")
```

```python
from fw import *
from k1 import inter, KB, NT
sW, sHALF, sB, sNT = S(3), S(5), S(6), S(7)
SRD_O, SRD_W, SRD_C = S(8, 4), S(12, 4), S(16, 4)
sLd, sOoff, sWoff, sCnt = S(40), S(41), S(42), S(43)
sT = [S(46), S(47), S(48), S(49)]
vLane, vT0, vT1, vT2 = V(1), V(2), V(3), V(4)
vOl = V(5)
vWd = [V(6 + i) for i in range(4)]
vWr = [V(10 + i) for i in range(8)]
vSt = V(18)
vRa, vRb = V(19), V(20)
ACC0 = 32
def acc(t, f): return V(ACC0 + f * 28 + t * 4, 4)
def Wset(p, f): return A(192 + 32 * p + 4 * f, 4)
def Oset(p, t): return A(28 * p + 4 * t, 4)

def dma_w(slot):
    g = []
    for p in range(8):
        ops = []
        if p % 4 == 0:
            ops.append(salu("s_add_u32", "m0", sLd, slot * 8 * KB + (p >> 2) * 4096))
            ops.append(salu("s_add_u32", sT[0], sWoff, (p >> 2) * 32768))
        ops.append(dma(vWd[p & 3], SRD_W, sT[0], (p & 3) * KB))
        g.append(ops)
    return g
def load_o(p, t):
    ops = []
    if t % 4 == 0: ops.append(salu("s_add_u32", sT[1], sOoff, (t >> 2) * 4096))
    ops.append(bload(Oset(p, t), vOl, SRD_O, sT[1], (t & 3) * KB))
    return ops
def adv(): return [salu("s_add_u32", sWoff, sWoff, 65536), salu("s_add_u32", sOoff, sOoff, 13 * KB)]
def reads_w(s):
    return [ds_r("ds_read_b64_tr_b16", Wset(s & 1, f)[2 * a:2 * a + 2], vWr[f], (s & 3) * 8 * KB + a * 4096) for f in range(8) for a in range(2)]

def kstep(s, vm, loads=True, reads=True, extra=()):
    mf = [mfma16(acc(t, f), Wset(s & 1, f), Oset(s & 3, t), acc(t, f)) for t in range(NT) for f in range(8)]
    gaps = {}
    add = lambda g, ops: gaps.setdefault(g, []).extend(ops)
    if reads:
        for k, r in enumerate(reads_w(s + 1)): add(k, [r])
    tailops = []
    if loads:
        for p, g in enumerate(dma_w(s & 3)): add(18 + 4 * p, g)
        for t in range(NT - 1): add(8 * t + 8, load_o(s & 3, t))
        tailops = load_o(s & 3, NT - 1) + adv()
    out = [wait(vm=vm, lgkm=0)] + inter(mf, gaps) + tailops + list(extra)
    return out

def build(name, stamp=False):
    ST = Stamps(stamp)
    P = []; e = P.append
    e(scmp("s_cmp_ge_u32", "s2", 256)); e(branch("s_cbranch_scc1", "L2_end"))
    P += ST()
    e(raw("s_load_dwordx4 s[28:31], s[0:1], 32", "smem"))
    e(raw("s_load_dwordx2 s[32:33], s[0:1], 56", "smem"))
    e(valu("v_lshrrev_b32", vT0, 6, "v0")); e(valu("v_and_b32", vLane, 63, "v0"))
    e(raw(f"v_readfirstlane_b32 {sW}, {vT0}", "valu", rd=[vT0], wr=[sW]))
    e(salu("s_and_b32", sT[0], "s2", 7)); e(salu("s_lshr_b32", sT[1], "s2", 3))
    e(salu("s_lshr_b32", sB, sT[0], 1)); e(salu("s_lshl_b32", sB, sB, 2)); e(salu("s_and_b32", sT[2], sT[1], 3)); e(salu("s_add_u32", sB, sB, sT[2]))
    e(salu("s_lshr_b32", sHALF, sT[1], 2)); e(salu("s_and_b32", sHALF, sHALF, 1))
    e(salu("s_and_b32", sNT, sT[0], 1)); e(salu("s_lshl_b32", sNT, sNT, 2)); e(salu("s_lshr_b32", sT[2], sT[1], 3)); e(salu("s_add_u32", sNT, sNT, sT[2]))
    e(salu("s_lshl_b32", sLd, sW, 15))
    e(valu("v_lshlrev_b32", vOl, 4, vLane))
    e(valu("v_lshrrev_b32", vT0, 4, vLane)); e(valu("v_lshlrev_b32", vT1, 1, vT0)); e(valu("v_and_b32", vT2, 15, vLane))
    e(valu("v_xor_b32", vT2, vT2, vT1)); e(valu("v_lshlrev_b32", vT2, 4, vT2)); e(valu("v_lshl_add_u32", vWd[0], vT0, 11, vT2))
    e(valu("v_xor_b32", vWd[1], 128, vWd[0])); e(valu("v_add_u32", vWd[1], 7168, vWd[1]))
    e(valu("v_add_u32", vWd[2], 2 * 7168, vWd[0])); e(valu("v_add_u32", vWd[3], 2 * 7168, vWd[1]))
    e(raw("s_waitcnt lgkmcnt(0)", "other"))
    e(salu("s_mul_i32", sT[0], sB, 128 * 13 * KB))
    e(salu("s_add_u32", SRD_O[0], "s32", sT[0])); e(salu("s_addc_u32", SRD_O[1], "s33", 0)); e(salu("s_mov_b32", SRD_O[2], 128 * 13 * KB)); e(salu("s_mov_b32", SRD_O[3], 0x20000))
    e(salu("s_lshl_b32", sT[0], sNT, 8))
    e(salu("s_add_u32", SRD_W[0], "s28", sT[0])); e(salu("s_addc_u32", SRD_W[1], "s29", 0)); e(salu("s_sub_u32", SRD_W[2], 8388608, sT[0])); e(salu("s_mov_b32", SRD_W[3], 0x20000))
    e(salu("s_mul_i32", sT[0], sB, 425984))
    e(salu("s_add_u32", SRD_C[0], "s30", sT[0])); e(salu("s_addc_u32", SRD_C[1], "s31", 0)); e(salu("s_mov_b32", SRD_C[2], 425984)); e(salu("s_mov_b32", SRD_C[3], 0x20000))
    e(salu("s_lshl_b32", sWoff, sW, 21))
    e(salu("s_mul_i32", sOoff, sW, 32 * 13 * KB)); e(salu("s_mul_i32", sT[0], sHALF, 6 * KB)); e(salu("s_add_u32", sOoff, sOoff, sT[0]))
    for s in range(4):
        for g in dma_w(s): P += g
        for t in range(NT): P += load_o(s, t)
        P += adv()
    e(valu("v_lshrrev_b32", vT1, 2, vLane)); e(valu("v_lshlrev_b32", vWr[0], 8, vT1))
    e(valu("v_and_b32", vT1, 7, vT1)); e(valu("v_lshl_add_u32", vWr[0], vT1, 5, vWr[0]))
    e(valu("v_and_b32", vT1, 3, vLane)); e(valu("v_lshl_add_u32", vWr[0], vT1, 3, vWr[0]))
    e(valu("v_add_u32", vWr[0], sLd, vWr[0]))
    for f in range(1, 8): e(valu("v_xor_b32", vWr[f], f * 32, vWr[0]))
    e(valu("v_and_b32", vT1, 15, vLane)); e(valu("v_lshlrev_b32", vSt, 11, vT1))
    e(valu("v_and_b32", vT1, 1, vT0)); e(valu("v_lshl_add_u32", vSt, vT1, 5, vSt))
    e(valu("v_lshrrev_b32", vT1, 1, vT0)); e(valu("v_lshl_add_u32", vSt, vT1, 4, vSt))
    e(salu("s_mul_i32", sT[0], sHALF, 96 * 2048)); e(salu("s_lshl_b32", sT[1], sNT, 8)); e(salu("s_add_u32", sT[0], sT[0], sT[1]))
    e(salu("s_lshl_b32", sT[1], sW, 6)); e(salu("s_add_u32", sT[0], sT[0], sT[1]))
    e(valu("v_add_u32", vSt, sT[0], vSt))
    for r in range(ACC0, 256): e(valu("v_mov_b32", V(r), 0))
    e(salu("s_mov_b32", sCnt, 0))
    e(wait(vm=45))
    P += ST()
    P += reads_w(0)
    L = [label("L2_loop")]
    for s in range(4):
        L += kstep(s, 30, extra=[salu("s_add_u32", sCnt, sCnt, 1), scmp("s_cmp_lt_u32", sCnt, 7), branch("s_cbranch_scc1", "L2_loop")] if s == 3 else ())
    T = ST() + kstep(0, 30, loads=False) + kstep(1, 15, loads=False) + kstep(2, 0, loads=False) + kstep(3, None, loads=False, reads=False)
    Rd = ST()
    k0 = ST.k
    e = Rd.append
    e(valu("v_add_u32", vRa, sLd, vOl))
    e(salu("s_xor_b32", sT[0], sLd, 2 << 15)); e(valu("v_add_u32", vRb, sT[0], vOl))
    e(nop(8))
    variants = []
    for w in range(4):
        o = [label(f"L2_red{w}")]
        hi, lo = w >> 1, w & 1
        keep = [4 * hi + k for k in range(4)]; send = [4 * (1 - hi) + k for k in range(4)]
        for i, f in enumerate(send):
            for t in range(NT): o.append(ds_w("ds_write_b128", vRa, acc(t, f), (i * NT + t) * KB))
        o += [wait(lgkm=0), barrier()]
        for i, f in enumerate(keep):
            for t in range(NT): o.append(ds_r("ds_read_b128", acc(t, send[i]), vRb, (i * NT + t) * KB))
        for i, f in enumerate(keep):
            for t in range(NT):
                for k in range(2): o.append(valu("v_pk_add_f32", acc(t, f)[2 * k:2 * k + 2], acc(t, f)[2 * k:2 * k + 2], acc(t, send[i])[2 * k:2 * k + 2]))
        o += [wait(lgkm=0), barrier()]
        keep2 = keep[2 * lo:2 * lo + 2]; send2 = keep[2 * (1 - lo):2 * (1 - lo) + 2]
        for i, f in enumerate(send2):
            for t in range(NT): o.append(ds_w("ds_write_b128", vRa, acc(t, f), (i * NT + t) * KB))
        o.append(salu("s_xor_b32", sT[0], sLd, 1 << 15)); o.append(valu("v_add_u32", vRb, sT[0], vOl))
        o += [wait(lgkm=0), barrier()]
        for i, f in enumerate(keep2):
            for t in range(NT): o.append(ds_r("ds_read_b128", acc(t, send2[i]), vRb, (i * NT + t) * KB))
        for t in range(NT):
            dst = acc(t, send[0])
            for i, f in enumerate(keep2):
                for k in range(2): o.append(valu("v_pk_add_f32", acc(t, f)[2 * k:2 * k + 2], acc(t, f)[2 * k:2 * k + 2], acc(t, send2[i])[2 * k:2 * k + 2]))
            for i, f in enumerate(keep2):
                for k in range(2): o.append(valu("v_cvt_pk_bf16_f32", dst[2 * i + k], acc(t, f)[2 * k], acc(t, f)[2 * k + 1]))
            o.append(nop(2))
            o.append(permswap("v_permlane16_swap_b32", dst[0], dst[2])); o.append(permswap("v_permlane16_swap_b32", dst[1], dst[3]))
            o.append(salu("s_mov_b32", sT[0], t * 32768))
            o.append(bstore(dst, vSt, SRD_C, sT[0]))
        ST.k = k0
        o += ST()
        o += ST.dump("s[32:33]", sW, 65 << 20)
        o.append(raw("s_endpgm"))
        variants.append(o)
    for w in range(1, 4):
        e(scmp("s_cmp_eq_u32", sW, w)); e(branch("s_cbranch_scc1", f"L2_red{w}"))
    END = [label("L2_end"), raw("s_endpgm")]
    for v in variants:
        trace = P + L + L + T + Rd + v
        for _ in range(4):
            if auto_lgkm(trace) == 0: break
        else: raise RuntimeError("lgkm not stable")
    for v in variants:
        probs = check_hazards(expand(P + L + L + T + Rd + v), name)
        for p in probs: print(p)
        assert not probs
    prog = P + L + T + Rd + sum(variants, []) + END
    return text(expand(prog))
if __name__ == "__main__":
    print(len(build("k2").splitlines()))
```

```python
import sys, importlib
sys.path.insert(0, "gen")
import k1, k2
HEAD = """; Fused MHA block (Q-projection + cached attention + output projection) for gfx950.
; @launch kernel=attn_kernel grid=(256,1,1) block=(256,1,1) lds=163840
; @launch kernel=oproj_kernel grid=(256,1,1) block=(256,1,1) lds=131072
.amdgcn_target "amdgcn-amd-amdhsa--gfx950"
"""
def khead(n): return f".text\n.globl {n}\n.p2align 8\n.type {n},@function\n{n}:\n"
def desc(n): return f""".section .rodata,"a"
.p2align 6
.amdhsa_kernel {n}
  .amdhsa_next_free_vgpr 512
  .amdhsa_next_free_sgpr 102
  .amdhsa_accum_offset 256
  .amdhsa_group_segment_fixed_size 0
  .amdhsa_kernarg_size 64
  .amdhsa_user_sgpr_count 2
  .amdhsa_user_sgpr_kernarg_segment_ptr 1
  .amdhsa_system_sgpr_workgroup_id_x 1
.end_amdhsa_kernel
"""
stamp = "--stamp" in sys.argv
args = [a for a in sys.argv[1:] if not a.startswith("--")]
out = args[0] if args else "standalone__mha_block_cached__near_ridge.s"
s = HEAD + khead("attn_kernel") + k1.build("k1", stamp) + khead("oproj_kernel") + k2.build("k2", stamp) + desc("attn_kernel") + desc("oproj_kernel")
open(out, "w").write(s)
print("wrote", out, len(s), "bytes")
```

```python
import re

def R(pre, lo, n=1):
    return [f"{pre}{lo+i}" for i in range(n)]
def rng(pre, lo, n):
    return f"{pre}{lo}" if n == 1 else f"{pre}[{lo}:{lo+n-1}]"

class Reg:
    def __init__(self, f, b, n=1): self.f, self.b, self.n = f, b, n
    def __str__(self): return rng(self.f, self.b, self.n)
    def regs(self): return R(self.f, self.b, self.n)
    def __getitem__(self, i):
        if isinstance(i, slice):
            st = i.start or 0; en = i.stop if i.stop is not None else self.n
            assert 0 <= st < en <= self.n, (st, en, self.n)
            return Reg(self.f, self.b + st, en - st)
        assert 0 <= i < self.n, (i, self.n)
        return Reg(self.f, self.b + i, 1)
def V(b, n=1): return Reg('v', b, n)
def A(b, n=1): return Reg('a', b, n)
def S(b, n=1): return Reg('s', b, n)

def regs_of(x):
    if isinstance(x, Reg): return x.regs()
    if isinstance(x, str):
        if x in ("vcc", "exec", "m0", "scc"): return [x]
        m = re.fullmatch(r"-?\|?([vas])(\d+)\|?", x)
        if m: return [m.group(1) + m.group(2)]
        m = re.fullmatch(r"([vas])\[(\d+):(\d+)\]", x)
        if m: return R(m.group(1), int(m.group(2)), int(m.group(3)) - int(m.group(2)) + 1)
    return []

class I:
    __slots__ = ("text", "kind", "rd", "wr", "post_lgkm", "pre_lgkm", "mf", "nstates", "comment")
    def __init__(self, text, kind, rd=(), wr=(), mf=None, nstates=1):
        self.text, self.kind = text, kind
        self.rd = set(); self.wr = set()
        for x in rd: self.rd.update(regs_of(x))
        for x in wr: self.wr.update(regs_of(x))
        self.post_lgkm = None; self.pre_lgkm = None
        self.mf = mf
        self.nstates = nstates
    def __repr__(self): return self.text

def mfma16(D, Aop, Bop, C):
    c = C if isinstance(C, Reg) else None
    return I(f"v_mfma_f32_16x16x32_bf16 {D}, {Aop}, {Bop}, {C}", "mfma", rd=[Aop, Bop] + ([c] if c else []), wr=[D],
             mf=dict(A=set(Aop.regs()), B=set(Bop.regs()), C=set(c.regs()) if c else set(), D=set(D.regs()), passes=4))
def valu(op, dst, *src, extra="", rmw=False, wr_extra=(), rd_extra=()):
    t = f"{op} {dst}, " + ", ".join(str(s) for s in src) + (" " + extra if extra else "")
    kind = "trans" if op.split("_e")[0] in ("v_exp_f32", "v_rcp_f32", "v_log_f32", "v_rsq_f32") else "valu"
    rd = list(src) + ([dst] if rmw else []) + list(rd_extra)
    return I(t, kind, rd=rd, wr=[dst] + list(wr_extra))
def permswap(op, a, b):
    return I(f"{op} {a}, {b}", "perm", rd=[a, b], wr=[a, b])
def salu(op, dst, *src):
    t = f"{op} {dst}, " + ", ".join(str(s) for s in src)
    return I(t, "salu", rd=list(src), wr=[dst, "scc"])
def scmp(op, a, b):
    return I(f"{op} {a}, {b}", "salu", rd=[a, b], wr=["scc"])
def ds_r(op, dst, addr, off):
    assert 0 <= off < 65536, off
    return I(f"{op} {dst}, {addr} offset:{off}", "lds_r", rd=[addr], wr=[dst])
def ds_w(op, addr, src, off):
    assert 0 <= off < 65536, off
    return I(f"{op} {addr}, {src} offset:{off}", "lds_w", rd=[addr, src])
def dma(voff, srd, soff, off=0, flags=""):
    assert 0 <= off < 4096
    return I(f"buffer_load_dwordx4 {voff}, {srd}, {soff} offen offset:{off}{(' ' + flags) if flags else ''} lds", "dma", rd=[voff, srd, soff, "m0"])
def bload(dst, voff, srd, soff, off=0, flags=""):
    assert 0 <= off < 4096
    op = {1: "dword", 2: "dwordx2", 4: "dwordx4"}[dst.n]
    return I(f"buffer_load_{op} {dst}, {voff}, {srd}, {soff} offen offset:{off}{(' ' + flags) if flags else ''}", "vmem_l", rd=[voff, srd, soff], wr=[dst])
def bstore(src, voff, srd, soff, off=0, flags=""):
    assert 0 <= off < 4096
    op = {1: "dword", 2: "dwordx2", 4: "dwordx4"}[src.n]
    return I(f"buffer_store_{op} {src}, {voff}, {srd}, {soff} offen offset:{off}{(' ' + flags) if flags else ''}", "vmem_s", rd=[src, voff, srd, soff])
def wait(vm=None, lgkm=None):
    t = "s_waitcnt" + (f" vmcnt({vm})" if vm is not None else "") + (f" lgkmcnt({lgkm})" if lgkm is not None else "")
    i = I(t, "wait"); i.mf = dict(vm=vm, lgkm=lgkm); return i
def nop(n):
    assert 1 <= n <= 16
    return I(f"s_nop {n-1}", "nop", nstates=n)
def barrier(): return I("s_barrier", "barrier")
def label(n): return I(f"{n}:", "label", nstates=0)
def branch(op, tgt): return I(f"{op} {tgt}", "branch", rd=["scc", "vcc"])
def raw(t, kind="other", rd=(), wr=()): return I(t, kind, rd=rd, wr=wr)
def comment(t): return I("; " + t, "label", nstates=0)

def auto_lgkm(trace):
    changes = 0
    pend = []
    last_mfma = None
    for idx, ins in enumerate(trace):
        def apply(n):
            nonlocal pend
            if n is not None and len(pend) > n: pend = pend[len(pend) - n:] if n else []
        apply(ins.pre_lgkm)
        if ins.kind == "wait": apply(ins.mf["lgkm"])
        touched = ins.rd | ins.wr
        need = -1
        for k, (ti, rg) in enumerate(pend):
            if rg & touched: need = k
        if need >= 0:
            ti = pend[need][0]
            if last_mfma is not None and last_mfma > ti and all(trace[q].kind not in ("label", "branch") or trace[q].text.startswith(";") for q in range(last_mfma, idx)):
                n = sum(1 for (t2, _) in pend[need + 1:] if t2 < last_mfma)
                q = trace[last_mfma]
                if q.post_lgkm is None or q.post_lgkm > n: q.post_lgkm = n; changes += 1
            else:
                n = len(pend) - need - 1
                if ins.pre_lgkm is None or ins.pre_lgkm > n: ins.pre_lgkm = n; changes += 1
            pend = pend[need + 1:]
        if ins.kind in ("lds_r", "lds_w") and len(pend) >= 15:
            if last_mfma is not None and last_mfma > pend[-1][0] and all(trace[q].kind not in ("label", "branch") or trace[q].text.startswith(";") for q in range(last_mfma, idx)):
                q = trace[last_mfma]
                if q.post_lgkm is None or q.post_lgkm > 8: q.post_lgkm = 8; changes += 1
            else:
                if ins.pre_lgkm is None or ins.pre_lgkm > 8: ins.pre_lgkm = 8; changes += 1
            pend = pend[-8:]
        if ins.kind == "lds_r": pend.append((idx, set(ins.wr)))
        elif ins.kind == "lds_w": pend.append((idx, set()))
        if ins.kind == "mfma": last_mfma = idx
        apply(ins.post_lgkm)
    return changes

def expand(seq):
    out = []
    for ins in seq:
        if ins.pre_lgkm is not None: out.append(wait(lgkm=ins.pre_lgkm))
        out.append(ins)
        if ins.post_lgkm is not None: out.append(wait(lgkm=ins.post_lgkm))
    return out

VALUK = ("valu", "trans", "perm")
def check_hazards(trace, name=""):
    probs = []
    pos = []; p = 0
    for ins in trace:
        pos.append(p); p += ins.nstates
    n = len(trace)
    def dist(i, j):
        return pos[j] - pos[i] - trace[i].nstates
    for i, a in enumerate(trace):
        if a.kind in ("label", "nop", "wait", "barrier", "branch"): continue
        for j in range(i + 1, min(n, i + 40)):
            b = trace[j]
            d = dist(i, j)
            if d >= 20: break
            need = 0; why = ""
            if a.kind == "mfma":
                D = a.mf["D"]
                if b.kind == "mfma":
                    if D & (b.mf["A"] | b.mf["B"]): need, why = 8, "mfma D->A/B"
                    elif D & b.mf["C"] and b.mf["C"] != D: need, why = 6, "mfma D->C partial"
                elif b.kind in VALUK + ("lds_r", "lds_w", "vmem_l", "vmem_s", "dma"):
                    if D & (b.rd | b.wr): need, why = 8, "mfma D->valu/mem"
                if b.kind in VALUK and a.mf["C"] & b.wr: need, why = max(need, 3), why + " srcC WAR"
            if a.kind in VALUK:
                vw = {r for r in a.wr if r[0] in "va" and r != "vcc"}
                sw = {r for r in a.wr if r[0] == "s" or r == "vcc"}
                if b.kind == "mfma" and vw & b.rd: need, why = max(need, 2), "valu->mfma"
                if b.kind == "perm" and vw & b.rd: need, why = max(need, 2), "valu->perm"
                if a.kind == "trans" and b.kind in ("valu", "perm") and vw & b.rd: need, why = max(need, 1), "trans->valu"
                if ("readfirstlane" in b.text or "readlane" in b.text) and vw & b.rd: need, why = max(need, 1), "valu->readlane"
                if sw & b.rd and b.kind in ("vmem_l", "vmem_s", "dma"): need, why = max(need, 5), "valu sgpr->vmem"
                if sw & b.rd and b.kind in VALUK: need, why = max(need, 2), "valu sgpr->valu"
            if a.kind == "salu" and "m0" in a.wr and b.kind == "dma": need, why = max(need, 1), "m0->dma"
            if a.kind == "vmem_s" and "x4" in a.text and b.kind in VALUK and (a.rd & b.wr): need, why = max(need, 2), "store data WAR"
            if need > d:
                probs.append(f"{name}: hazard {why}: need {need} have {d}:\n    {a.text}\n    {b.text}")
    return probs

def text(seq):
    out = []
    for ins in seq:
        out.append(ins.text if ins.kind == "label" and not ins.text.startswith(";") else "  " + ins.text)
    return "\n".join(out) + "\n"

class Stamps:
    def __init__(self, on, base=60, n=8): self.on, self.base, self.n, self.k = on, base, n, 0
    def __call__(self):
        if not self.on: return []
        k = self.k; self.k += 1; assert k < self.n
        return [raw(f"s_memrealtime s[{self.base+2*k}:{self.base+2*k+1}]", "smem"), raw(f"s_memtime s[{self.base+2*self.n+2*k}:{self.base+2*self.n+2*k+1}]", "smem")]
    def dump(self, wsreg, wave_sgpr, off):
        if not self.on: return []
        o = [raw("s_waitcnt vmcnt(0) lgkmcnt(0)", "other")] + self() + [raw("s_waitcnt lgkmcnt(0)", "other")]
        o.append(raw(f"s_lshl_b32 s58, s2, 2", "salu")); o.append(raw(f"s_add_u32 s58, s58, {wave_sgpr}", "salu"))
        o.append(raw(f"s_mul_i32 s58, s58, {self.n*16}", "salu")); o.append(raw(f"s_add_u32 s58, s58, {off}", "salu"))
        o.append(raw("v_mov_b32 v7, s58", "other")); o.append(raw("s_mov_b64 exec, 1", "other"))
        for i in range(2 * self.n):
            o += [raw(f"v_mov_b32 v4, s{self.base+2*i}", "other"), raw(f"v_mov_b32 v5, s{self.base+2*i+1}", "other"),
                  raw(f"global_store_dwordx2 v7, v[4:5], {wsreg} offset:{8*i}", "other"), raw("s_nop 1", "other")]
        o.append(raw("s_waitcnt vmcnt(0)", "other"))
        o.append(raw("s_mov_b64 exec, -1", "other"))
        return o
```

```python
from fw import *
import struct, os
OPT = dict(kv.split('=') for kv in os.environ.get('K1OPT', '').split(',') if kv)
def f32(x): return "0x%08x" % struct.unpack("<I", struct.pack("<f", x))[0]
KB = 1024
QSCALE = 1.4426950408889634 * (128 ** -0.5)

sW, sHH, sHALF, sB, sHEAD = S(3), S(4), S(5), S(6), S(7)
SRD_X, SRD_W, SRD_K, SRD_V, SRD_O = S(8, 4), S(12, 4), S(16, 4), S(20, 4), S(24, 4)
sRot = S(39)
sXld, sWld, sSPld = S(40), S(41), S(42)
sXoff, sWoff, sKoff = S(43), S(44), S(45)
sT = [S(46), S(47), S(48), S(49)]
sCnt, sFB = S(50), S(51)
sScale = S(52, 2)
sOoff, sKlin = S(54), S(55)
sTmp2 = S(56, 2)
def kadv(): return [salu('s_add_u32', sKlin, sKlin, 8192), salu('s_xor_b32', sKoff, sKlin, sRot)]

vLane, vT0, vT1, vT2 = V(1), V(2), V(3), V(29)
vXd, vWd, vKd, vKd2 = V(4), V(5), V(6), V(31)
vXr = [V(7), V(8)]
vWr = [V(9 + i) for i in range(4)]
vKr = [V(13 + i) for i in range(4)]
vVr = [V(17 + i) for i in range(8)]
vKs = [V(25 + i) for i in range(4)]
vOst = V(30)
ACC0 = 32
def acc(t, f): return V(ACC0 + t * 32 + f * 4, 4)
def Qf(t, ds): return V(ACC0 + t * 32 + ds * 4, 4)
def fr(t, o, n): return V(ACC0 + t * 32 + 16 + o, n)
def Cm(t): return fr(t, 0, 4)
def Lr(t): return fr(t, 4, 1)
def Tm(t): return fr(t, 5, 1)
def Tm2(t): return fr(t, 6, 2)
SB = [fr(0, 8, 8), fr(1, 8, 8)]
PB = [fr(2, 8, 4), fr(2, 12, 4)]
def O6(dt): return fr(3 + (dt >> 1), 8 + 4 * (dt & 1), 4)
def Oacc(t, dt): return A(t * 32 + dt * 4, 4) if t < 6 else O6(dt)
def Kf(f): return A(192 + 4 * f, 4)
def Vf(dt): return A(224 + 4 * dt, 4)
def Wset(p, f): return A(112 + 32 * p + 4 * f, 4)
def Xset(p, t): return A(28 * p + 4 * t, 4)

def inter(mf, gaps):
    out = []
    assert all(0 <= k < len(mf) for k in gaps), (sorted(gaps), len(mf))
    order = lambda i: 0 if i.kind in ("salu", "wait", "barrier", "branch", "label", "smem", "nop") else (1 if i.kind in ("lds_r", "lds_w", "dma", "vmem_l", "vmem_s") else 2)
    for k, m in enumerate(mf):
        out.append(m)
        out.extend(sorted(gaps.get(k, []), key=order))
    return out
flat = lambda gs: [o for g in gs for o in g]

def wchunk(s): return (1 + 4 * (s & 1) + 2 * ((s >> 1) & 1)) * 8 * KB

def dma_w(s):
    g = []
    for p in range(8):
        ops = []
        if p % 4 == 0: ops.append(salu("s_add_u32", "m0", sWld, wchunk(s) + (p >> 2) * 4096))
        ops.append(salu("s_add_u32", sT[p & 1], sWoff, p * 32768 - (p & 3) * KB))
        ops.append(dma(vWd, SRD_W, sT[p & 1], (p & 3) * KB))
        g.append(ops)
    g[-1] = g[-1] + [salu("s_add_u32", sWoff, sWoff, 262144)]
    return g
def dma_x(par, lo, hi):
    g = []
    for T in range(lo, hi):
        fh, t = (0, T) if T < 7 else (1, T - 7)
        ops = [salu("s_add_u32", "m0", sXld, fh * 64 * KB + par * 16 * KB + t * KB), salu("s_add_u32", sT[T & 1], sXoff, T * 32768),
               dma(vXd, SRD_X, sT[T & 1], 0)]
        g.append(ops)
    if hi == 13: g[-1] = g[-1] + [salu("s_add_u32", sXoff, sXoff, 128)]
    return g
KVF = OPT.get("kvflag", "nt").replace("none", "")
def dma_kv(which, base, off):
    srd = SRD_K if which == "K" else SRD_V
    g = []
    for p in range(8):
        pre = [salu("s_add_u32", "m0", base, off + (p >> 2) * 4096)] if p % 4 == 0 else []
        g.append((pre, dma(vKd if p < 4 else vKd2, srd, sKoff, (p & 3) * KB, KVF)))
    return g
def kv_groups(g): return [pre + ([nop(1)] if pre else []) + [d] for pre, d in g]

def reads_w(s):
    r = []
    for f in range(8):
        ds, T = f >> 1, f & 1
        for a in range(2):
            r.append(ds_r("ds_read_b64_tr_b16", Wset(s & 1, f)[2 * a:2 * a + 2], vWr[ds], wchunk(s) + a * KB + 8 * T))
    return r
def read_k(f, addr, off): return ds_r("ds_read_b128", Kf(f), addr[f & 3], off + (f >> 2) * 2048)
def read_v(dt, kt, addr, off): return ds_r("ds_read_b64_tr_b16", Vf(dt)[2 * kt:2 * kt + 2], addr[dt], off + kt * 2048)

def qk_block(t, sb, cinit=True):
    mf = []
    for kt in range(2):
        D = SB[sb][4 * kt:4 * kt + 4]
        for ds in range(4):
            mf.append(mfma16(D, Kf(4 * kt + ds), Qf(t, ds), (Cm(t) if cinit else 0) if ds == 0 else D))
    return mf
def pv_block(t, sb, first=False):
    return [mfma16(Oacc(t, dt), Vf(dt), PB[sb], 0 if first else Oacc(t, dt)) for dt in range(8)]
def E(sb, i): return valu("v_exp_f32", SB[sb][i], SB[sb][i])
def AD(t, sb, i): return valu("v_add_f32", Lr(t), Lr(t), SB[sb][i])
def CV(sb, k): return valu("v_cvt_pk_bf16_f32", PB[sb][k], SB[sb][2 * k], SB[sb][2 * k + 1])
def sm_half(t, sb, h):
    o = 4 * h
    return {0: [AD(t, sb, o)], 1: [E(sb, o + 1)], 2: [AD(t, sb, o + 1), CV(sb, 2 * h)], 3: [E(sb, o + 2)],
            4: [AD(t, sb, o + 2)], 5: [E(sb, o + 3)], 6: [AD(t, sb, o + 3), CV(sb, 2 * h + 1)]}

def xgroup_reduce(op, regs, tmps):
    o = []
    for sw in ("v_permlane16_swap_b32", "v_permlane32_swap_b32"):
        for r, t in zip(regs, tmps): o.append(valu("v_mov_b32", t, r))
        o.append(nop(2))
        for r, t in zip(regs, tmps): o.append(permswap(sw, r, t))
        o.append(nop(1))
        for r, t in zip(regs, tmps): o.append(valu(op, r, r, t))
    return o

class Role:
    def __init__(self, NT, loader, tag, ST):
        self.NT, self.loader, self.tag, self.ST = NT, loader, tag, ST
    def L(self, n): return f"L1{self.tag}_{n}"
    def reads_x(self, a):
        return [ds_r("ds_read_b128", Xset((a & 1) * 2 + sp, t), vXr[sp], (a & 1) * 16 * KB + t * KB) for sp in range(2) for t in range(self.NT)]
    def kstep(self, s, vm, reads, dmas, extra=None, vma=None):
        NT = self.NT
        a = s >> 1
        mf = [mfma16(acc(t, f), Wset(s & 1, f), Xset((a & 1) * 2 + (s & 1), t), acc(t, f)) for t in range(NT) for f in range(8)]
        gaps = {}
        n = len(mf)
        span = n - 10
        for i, r in enumerate(reads): gaps.setdefault(i * span // max(len(reads), 1), []).append(r)
        if OPT.get("noqdma") and not any("s[16:19]" in str(o) for g in dmas for o in g): dmas = [[o for o in g if o.kind != "dma"] for g in dmas]
        if OPT.get("noqread"): gaps = {}
        if self.loader:
            pos = [1 + i * (n - 3) // max(len(dmas), 1) for i in range(len(dmas))]
            assert len(set(pos)) == len(pos)
            for k, g in zip(pos, dmas): gaps.setdefault(k, []).extend(g)
        for k, ops in (extra or {}).items(): gaps.setdefault(k, []).extend(ops)
        head = [wait(vm=vm if self.loader else vma, lgkm=0)] + ([] if OPT.get("noqbar") else [barrier()])
        return head + inter(mf, gaps)
    def period(self, j, first=False, exit_label=None, wot=False):
        NT = self.NT
        out = []
        slot_cur = (j - 1) & 3
        slot_nxt = j & 3
        dm = []
        if self.loader and not first:
            dm = dma_kv("K", sWld, slot_cur * 8 * KB) + dma_kv("V", sWld, 32 * KB + slot_cur * 8 * KB)
        H = 2 * NT
        for hs in range(H):
            t = hs >> 1
            sb = (j * NT + t) & 1
            tn = (t + 1) % NT
            if hs % 2 == 0:
                mf = qk_block(tn, sb ^ 1); gaps = sm_half(t, sb, 1); gaps[7] = [E(sb ^ 1, 0)]
            else:
                mf = pv_block(t, sb, first); gaps = sm_half(tn, sb ^ 1, 0); gaps[7] = [E(sb ^ 1, 4)]
            def add(g, ops): gaps.setdefault(g, []).extend(ops)
            if hs == 0 and not first:
                for g in range(8): add(g, [read_v(4 + (g >> 1), g & 1, vVr, slot_cur * 8 * KB)])
            if hs == H - 1:
                for g in range(8): add(g, [read_v(g >> 1, g & 1, vVr, slot_nxt * 8 * KB)])
            if hs in (H - 4, H - 3):
                for q in range(4): add(2 * q, [read_k(4 * (hs - (H - 4)) + q, vKr, slot_nxt * 8 * KB)])
            if hs == 1:
                add(7, ([wait(vm=48 if first else 32)] if self.loader else []) + [barrier()])
            if dm and 2 <= hs <= 9:
                for q in range(2):
                    pre, d = dm[2 * (hs - 2) + q]
                    add(4 * q + 1, pre); add(4 * q + 3, [d])
            if wot and hs in (4, 6):
                add(1, [scmp("s_cmp_eq_u32", sCnt, 7)]); add(2, [salu("s_cselect_b32", sT[0], sXoff if hs == 4 else sWoff, 0x1000000)])
                add(4, [bload(vKd2, vWd, SRD_W, sT[0])])
            if dm and hs == 10: add(0, kadv()[:1]); add(1, kadv()[1:])
            if exit_label and hs == H - 3:
                add(6, [scmp("s_cmp_eq_u32", sCnt, 7)])
            out += inter(mf, gaps)
            if exit_label and hs == H - 3:
                out.append(branch("s_cbranch_scc1", exit_label))
        return out

    def build(self):
        NT, ST, L = self.NT, self.ST, self.L
        ld = self.loader
        P = [label(L("start"))]
        e = P.append
        if ld:
            P += flat(dma_w(0)) + flat(dma_x(0, 0, 13)) + flat(dma_w(1))
        P += common_addr()
        for r in range(ACC0, ACC0 + 32 * NT): e(valu("v_mov_b32", V(r), 0))
        if ld:
            e(salu("s_add_u32", sXoff, sXoff, 128)); e(salu("s_add_u32", sWoff, sWoff, 262144))
            P += kadv()
            e(wait(vm=8))
        else:
            e(salu("s_mov_b32", sXoff, 128)); e(salu("s_mov_b32", sWoff, 2 * 262144))
            P += flat(dma_x(1, 0, 13)) + flat(dma_w(2))
        e(barrier())
        P += ST()
        P += reads_w(0) + self.reads_x(0)
        if ld:
            P += flat(dma_w(3)) + [wait(vm=8)]
        else:
            for k in range(4): e(salu("s_mov_b32", SRD_X[k], SRD_K[k] if k < 3 else 0x20000))
            e(salu("s_mov_b32", sXld, sSPld))
            e(valu("v_mov_b32", vXd, vKd))
            e(valu("v_lshlrev_b32", vWd, 7, vLane))
            if OPT.get("codepf", "1") == "1": P += code_touch()
            P += touch_wo_setup()
        def qloop(name, last, bg):
            QL = [label(L(name))]
            for s in range(4):
                reads = reads_w(s + 1) + (self.reads_x((s + 1) >> 1) if s & 1 else [])
                dmas = (dma_x(s >> 1, 0, 7) if s % 2 == 0 else dma_x(s >> 1, 7, 13)) + dma_w(s)
                extra = bg(s) if not ld else {}
                if s == 3: extra.update({8 * NT - 2: [salu("s_add_u32", sCnt, sCnt, 1)], 8 * NT - 1: [scmp("s_cmp_lt_u32", sCnt, last)]})
                QL += self.kstep(s, 29 if s % 2 == 0 else 23, reads, dmas, extra, vma=1 if (s == 1 and name == "qloopA") else None)
            QL.append(branch("s_cbranch_scc1", L(name)))
            return QL
        def bgA(s):
            x = {3: [dma(vXd, SRD_X, sKoff, s * KB, KVF)]}
            if s == 0: x[1] = [salu("s_mov_b32", "m0", sXld)]
            if s == 3:
                x[5] = [salu("s_add_u32", sXld, sXld, 4096), valu("v_xor_b32", vXd, 0x1080, vXd)]
                x[7] = [scmp("s_cmp_eq_u32", sCnt, 1)]
                x[8] = [salu("s_cselect_b32", SRD_X[0], SRD_V[0], SRD_X[0])]
                x[9] = [salu("s_cselect_b32", SRD_X[1], SRD_V[1], SRD_X[1])]
            return x
        def touch(w): return bload(vKd2, vWd, SRD_K if w == "K" else SRD_V, sKoff, 0, OPT.get("pfflag", ""))
        NPF = int(OPT.get("npf", "0"))
        def bgB(s):
            if not NPF: return {}
            if s == 0: return {1: kadv()[:1], 2: kadv()[1:], 3: [touch("K")]}
            if s == 2: return {3: [touch("V")]}
            return {}
        def bgT(s):
            if NPF < 2 or ld: return {}
            if s % 2 == 0: return {1: kadv()[:1], 2: kadv()[1:], 3: [touch("K")]}
            return {3: [touch("V")]}
        if ld:
            QL = qloop("qloop", 7, None)
            QLt = QL + QL
        else:
            QA, QB = qloop("qloopA", 4, bgA), qloop("qloopB", 7, bgB)
            QL = QA + QB
            QLt = QA + QA + QB + QB
        QT = ST()
        kvg = lambda w, off: kv_groups(dma_kv(w, sWld, off))
        vVs = [V(0), vT0, vT1, vT2] + vKs
        spv = [salu("s_sub_u32", sT[2], sSPld, sWld), salu("s_sub_u32", sT[2], sT[2], 24 * KB)]
        def mrg(a, b):
            for k, v in b.items(): a.setdefault(k, []).extend(v)
            return a
        QT += self.kstep(0, 29, reads_w(1), kvg("K", 0) + kvg("V", 32 * KB) + [kadv()], bgT(0), vma=6 if NPF else 0)
        QT += self.kstep(1, 24, reads_w(2) + self.reads_x(1), kvg("K", 8 * KB) + kvg("V", 40 * KB) + [kadv()], bgT(1))
        QT += self.kstep(2, 32, [read_k(f, vKs, 0) for f in range(8)] + reads_w(3), kvg("K", 16 * KB) + kvg("V", 48 * KB) + [kadv()],
                         mrg(bgT(2), {30: spv, **{32 + dt: [valu("v_add_u32", vVs[dt], sT[2], vVr[dt])] for dt in range(8)}}))
        QT += self.kstep(3, None, [read_v(dt, kt, vVs, 0) for dt in range(8) for kt in range(2)], kvg("K", 24 * KB) + kvg("V", 56 * KB) + [kadv()], bgT(3))
        T = ST()
        e = T.append
        def conv(t):
            o = []
            for ds in range(4):
                src = V(ACC0 + t * 32 + ds * 8, 8)
                for k in range(4): o.append(valu("v_pk_mul_f32", src[2 * k:2 * k + 2], src[2 * k:2 * k + 2], sScale))
                for k in range(4): o.append(valu("v_cvt_pk_bf16_f32", Qf(t, ds)[k], src[2 * k], src[2 * k + 1]))
            return o
        def prepass(t): return [mfma16(Cm(t), Kf(ds), Qf(t, ds), 0 if ds == 0 else Cm(t)) for ds in range(4)]
        for t in range(NT):
            c = conv(t)
            if t:
                pp = prepass(t - 1)
                c = c[:4] + pp + c[4:]
            T += c
        e(nop(2))
        T += prepass(NT - 1)
        for t in range(NT): e(valu("v_mov_b32", Lr(t), 0))
        e(nop(2))
        for t in range(NT): e(valu("v_max3_f32", Cm(t)[0], Cm(t)[0], Cm(t)[1], Cm(t)[2]))
        for t in range(NT): e(valu("v_max_f32", Cm(t)[0], Cm(t)[0], Cm(t)[3]))
        T += xgroup_reduce("v_max_f32", [Cm(t)[0] for t in range(NT)], [Cm(t)[1] for t in range(NT)])
        for k in (3, 2, 1, 0): e(valu("v_sub_f32", Cm(0)[k], 0, Cm(0)[0]))
        e(salu("s_mov_b32", sCnt, 0)); e(nop(1))
        rest = [valu("v_sub_f32", Cm(t)[k], 0, Cm(t)[0]) for t in range(1, NT) for k in (3, 2, 1, 0)]
        T += inter(qk_block(0, 0), {k: rest[3 * k:3 * k + 3] for k in range(8)})
        e(nop(4))
        for i in range(4): e(E(0, i))
        e(E(0, 4))
        for i in range(4): e(AD(0, 0, i))
        e(CV(0, 0)); e(CV(0, 1))
        A0 = ST() + self.period(0, first=True)
        AL = [label(L("aloop"))] + self.period(1, wot=not ld) + self.period(2)
        ALa = self.period(3, exit_label=L("tail"))
        cut = max(i for i, x in enumerate(ALa) if x.kind == "branch") + 1
        ALb = self.period(4) + [salu("s_add_u32", sCnt, sCnt, 1), branch("s_branch", L("aloop"))]
        TL = [label(L("tail"))] + ST()
        sb = (3 * NT + NT - 1) & 1
        g = sm_half(NT - 1, sb, 1)
        for k in (1, 3, 5): TL += g[k]
        TL.append(nop(1))
        for k in (0, 2, 4, 6): TL += g[k]
        TL.append(nop(2))
        TL += pv_block(NT - 1, sb)
        EP = [label(L("epi"))]
        e = EP.append
        EP += xgroup_reduce("v_add_f32", [Lr(t) for t in range(NT)], [Tm(t) for t in range(NT)])
        vChk, vChl = vT0, vT1
        e(valu("v_mov_b32", vChk, 0)); e(valu("v_mov_b32", vChl, 0))
        for t in range(0, NT - 1, 2): e(valu("v_maximum3_f32", vChl, Lr(t), Lr(t + 1), vChl))
        if NT % 2: e(valu("v_maximum3_f32", vChl, Lr(NT - 1), Lr(NT - 1), vChl))
        for t in range(NT): e(valu("v_rcp_f32", Tm2(t)[0], Lr(t)))
        outs = [PB[0], PB[1], V(8, 4), V(24, 4)]
        n = 0
        for t in range(NT):
            for ds in range(4):
                st = SB[n & 1]; o = outs[n % 2]; n += 1
                if t < 6:
                    for k in range(8): e(valu("v_accvgpr_read_b32", st[k], A(t * 32 + ds * 8 + k)))
                    src = st
                else:
                    src = V(O6(2 * ds).b, 8)
                for k in range(4): e(valu("v_maximum3_f32", vChk, f"|{src[2*k]}|", f"|{src[2*k+1]}|", vChk))
                for k in range(4): e(valu("v_pk_mul_f32", st[2 * k:2 * k + 2], src[2 * k:2 * k + 2], Tm2(t), extra="op_sel_hi:[1,0]"))
                for k in range(4): e(valu("v_cvt_pk_bf16_f32", o[k], st[2 * k], st[2 * k + 1]))
                e(salu("s_add_u32", sT[0], sOoff, (ds * 13 + t) * KB))
                e(bstore(o, vOst, SRD_O, sT[0], 0, "sc1" if FUSED else ""))
        EP += ST()
        EP += ST.dump("s[98:99]", sW, 64 << 20)
        e(scmp("s_cmp_lg_u32", sFB, 0)); e(branch("s_cbranch_scc1", "L1_done"))
        e(salu("s_mov_b32", sT[0], 0x7f800000)); e(salu("s_mov_b32", sT[1], f32(2.0 ** 100)))
        e(raw(f"v_cmp_ngt_f32 vcc, {sT[0]}, {vChk}", "valu", rd=[sT[0], vChk], wr=["vcc"]))
        e(raw(f"v_cmp_ngt_f32 {sTmp2}, {sT[1]}, {vChl}", "valu", rd=[sT[1], vChl], wr=[sTmp2]))
        e(nop(4))
        e(raw(f"s_or_b64 vcc, vcc, {sTmp2}", "salu", rd=["vcc", sTmp2], wr=["vcc", "scc"]))
        e(branch("s_cbranch_scc0", "L1_done"))
        FB = []
        e = FB.append
        e(wait(vm=0, lgkm=0))
        e(salu("s_mov_b32", sFB, 1))
        e(valu("v_xor_b32", vKd2, 0x1080, vKd))
        sBuf = sXld
        e(salu("s_lshl_b32", sBuf, sW, 13)); e(salu("s_add_u32", sBuf, sBuf, 128 * KB))
        e(salu("s_sub_u32", sT[0], sBuf, sWld))
        for ds in range(4): e(valu("v_add_u32", vKr[ds], sT[0], vKr[ds]))
        e(salu("s_sub_u32", sT[0], sT[0], 32 * KB))
        for dt in range(8): e(valu("v_add_u32", vVr[dt], sT[0], vVr[dt]))
        def fb_load(w): return flat(kv_groups(dma_kv(w, sBuf, 0))) + [wait(vm=0)]
        for t in range(NT): e(valu("v_mov_b32", Lr(t), "0xff800000"))
        e(salu("s_mov_b32", sKoff, 0))
        F1 = [label(L("fb1"))] + fb_load("K") + [read_k(f, vKr, 0) for f in range(8)] + [wait(lgkm=0)]
        for t in range(NT):
            F1 += qk_block(t, t & 1, cinit=False) + [nop(8)]
            for k in range(4): F1.append(valu("v_max3_f32", Lr(t), Lr(t), SB[t & 1][2 * k], SB[t & 1][2 * k + 1]))
        F1 += [salu("s_add_u32", sKoff, sKoff, 8192), scmp("s_cmp_lt_u32", sKoff, 262144), branch("s_cbranch_scc1", L("fb1"))]
        F2 = xgroup_reduce("v_max_f32", [Lr(t) for t in range(NT)], [Tm(t) for t in range(NT)])
        for t in range(NT):
            for k in range(4): F2.append(valu("v_sub_f32", Cm(t)[k], 0, Lr(t)))
        for t in range(NT): F2.append(valu("v_mov_b32", Lr(t), 0))
        for r in range(192): F2.append(valu("v_accvgpr_write_b32", A(r), 0))
        if NT > 6:
            for dt in range(8):
                for k in range(4): F2.append(valu("v_mov_b32", O6(dt)[k], 0))
        F2.append(salu("s_mov_b32", sKoff, 0))
        F3 = [label(L("fb2"))] + fb_load("K") + [read_k(f, vKr, 0) for f in range(8)] + [wait(lgkm=0)]
        F3 += fb_load("V") + [read_v(dt, kt, vVr, 0) for dt in range(8) for kt in range(2)] + [wait(lgkm=0)]
        for t in range(NT):
            sb = t & 1
            F3 += qk_block(t, sb) + [nop(8)] + [E(sb, i) for i in range(8)] + [nop(1)] + [AD(t, sb, i) for i in range(8)] + [CV(sb, k) for k in range(4)] + [nop(2)] + pv_block(t, sb)
        F3 += [salu("s_add_u32", sKoff, sKoff, 8192), scmp("s_cmp_lt_u32", sKoff, 262144), branch("s_cbranch_scc1", L("fb2"))]
        F4 = [nop(8), branch("s_branch", L("epi"))]
        body = AL + ALa + ALb
        trace = P + QLt + QT + T + A0 + body + body + AL + ALa[:cut] + TL + EP + FB + F1 + F1 + F2 + F3 + F3 + F4 + EP
        prog = P + QL + QT + T + A0 + body + TL + EP + FB + F1 + F2 + F3 + F4
        return trace, prog

def touch_wo_setup():
    o = []
    e = o.append
    srd = SRD_W
    e(salu("s_mov_b32", srd[0], "s92")); e(salu("s_mov_b32", srd[1], "s93")); e(salu("s_mov_b32", srd[2], 8388608)); e(salu("s_mov_b32", srd[3], 0x20000))
    e(salu("s_lshl_b32", sXoff, "s2", 15)); e(salu("s_lshl_b32", sT[1], sHH, 14)); e(salu("s_add_u32", sXoff, sXoff, sT[1]))
    e(salu("s_add_u32", sWoff, sXoff, 8192))
    return o

def code_touch():
    o = []
    e = o.append
    srd = SRD_W
    e(raw("s_getpc_b64 s[56:57]", "salu", wr=[sTmp2]))
    e(raw("L1_pc:", "label"))
    e(raw("s_sub_u32 s56, s56, L1_pc-attn_kernel", "salu", rd=[sTmp2], wr=[sTmp2, "scc"]))
    e(raw("s_subb_u32 s57, s57, 0", "salu", rd=[sTmp2], wr=[sTmp2, "scc"]))
    e(salu("s_lshr_b32", sT[0], "s2", 3)); e(salu("s_lshl_b32", sT[0], sT[0], 1)); e(salu("s_add_u32", sT[0], sT[0], sHH)); e(salu("s_lshl_b32", sT[0], sT[0], 10))
    e(salu("s_add_u32", srd[0], "s56", sT[0])); e(salu("s_addc_u32", srd[1], "s57", 0)); e(salu("s_mov_b32", srd[2], 1024)); e(salu("s_mov_b32", srd[3], 0x20000))
    e(bload(vKd2, vWd, srd, 0))
    return o

def common_addr():
    P = []
    e = P.append
    vRho = vT2
    e(valu("v_lshrrev_b32", vT0, 4, vLane))
    e(valu("v_and_b32", vRho, 15, vLane))
    e(valu("v_and_b32", vT1, 6, vRho)); e(valu("v_xor_b32", vT1, vT1, vT0)); e(valu("v_lshlrev_b32", vXr[0], 4, vT1))
    e(valu("v_and_b32", vT1, 7, vRho)); e(valu("v_lshl_add_u32", vXr[0], vT1, 7, vXr[0]))
    e(valu("v_lshrrev_b32", vT1, 3, vRho)); e(valu("v_lshl_add_u32", vXr[0], vT1, 15, vXr[0]))
    e(salu("s_lshl_b32", sT[0], sHALF, 16)); e(valu("v_add_u32", vXr[0], sT[0], vXr[0]))
    e(valu("v_xor_b32", vXr[1], 64, vXr[0]))
    e(valu("v_lshlrev_b32", vWr[0], 4, vRho)); e(valu("v_lshrrev_b32", vT1, 2, vRho)); e(valu("v_lshl_add_u32", vWr[0], vT1, 8, vWr[0]))
    e(valu("v_lshl_add_u32", vWr[0], vT0, 11, vWr[0]))
    e(valu("v_add_u32", vWr[0], sWld, vWr[0]))
    for ds in range(1, 4): e(valu("v_xor_b32", vWr[ds], ds * 64, vWr[0]))
    def kappa(dst, rho, tmp):
        e(valu("v_and_b32", dst, 3, rho)); e(valu("v_lshrrev_b32", tmp, 3, rho)); e(valu("v_lshl_add_u32", dst, tmp, 2, dst))
        e(valu("v_and_b32", tmp, 4, rho)); e(valu("v_lshl_add_u32", dst, tmp, 2, dst))
    kappa(vKr[0], vRho, vT1)
    e(valu("v_lshlrev_b32", vKr[0], 8, vKr[0]))
    e(valu("v_and_b32", vT1, 7, vRho)); e(valu("v_lshlrev_b32", vT1, 1, vT1)); e(valu("v_xor_b32", vT1, vT1, vT0))
    e(valu("v_lshl_add_u32", vKr[0], vT1, 4, vKr[0])); e(valu("v_add_u32", vKr[0], sWld, vKr[0]))
    for ds in range(1, 4): e(valu("v_xor_b32", vKr[ds], ds * 64, vKr[0]))
    e(salu("s_sub_u32", sT[2], sSPld, sWld))
    for ds in range(4): e(valu("v_add_u32", vKs[ds], sT[2], vKr[ds]))
    e(valu("v_lshrrev_b32", vRho, 2, vLane))
    kappa(vVr[0], vRho, vT1)
    e(valu("v_lshlrev_b32", vVr[0], 8, vVr[0]))
    e(valu("v_and_b32", vT1, 7, vRho)); e(valu("v_lshl_add_u32", vVr[0], vT1, 5, vVr[0]))
    e(valu("v_and_b32", vT1, 3, vLane)); e(valu("v_lshl_add_u32", vVr[0], vT1, 3, vVr[0]))
    e(salu("s_add_u32", sT[1], sWld, 32 * KB)); e(valu("v_add_u32", vVr[0], sT[1], vVr[0]))
    for dt in range(1, 8): e(valu("v_xor_b32", vVr[dt], dt * 32, vVr[0]))
    e(valu("v_lshlrev_b32", vOst, 4, vLane))
    e(salu("s_mul_i32", sOoff, sHEAD, 52 * KB)); e(salu("s_mul_i32", sT[0], sHALF, 7 * KB)); e(salu("s_add_u32", sOoff, sOoff, sT[0]))
    e(salu("s_mov_b32", sScale[0], f32(QSCALE))); e(salu("s_mov_b32", sScale[1], f32(QSCALE)))
    e(salu("s_mov_b32", sFB, 0)); e(salu("s_mov_b32", sCnt, 0))
    return P

def build(name, stamp=False, fused=False):
    global FUSED
    FUSED = fused
    ST = Stamps(stamp)
    P = []
    e = P.append
    e(scmp("s_cmp_ge_u32", "s2", 256)); e(branch("s_cbranch_scc1", "L1_end"))
    P += ST()
    e(raw("s_load_dwordx8 s[28:35], s[0:1], 0", "smem"))
    e(raw("s_load_dwordx8 s[92:99], s[0:1], 32", "smem"))
    e(valu("v_lshrrev_b32", vT0, 6, "v0")); e(valu("v_and_b32", vLane, 63, "v0"))
    e(raw(f"v_readfirstlane_b32 {sW}, {vT0}", "valu", rd=[vT0], wr=[sW]))
    e(salu("s_and_b32", sT[0], "s2", 7)); e(salu("s_lshr_b32", sT[1], "s2", 3))
    e(salu("s_and_b32", sB, sT[0], 1)); e(salu("s_lshl_b32", sB, sB, 3)); e(salu("s_and_b32", sT[2], sT[1], 7)); e(salu("s_add_u32", sB, sB, sT[2]))
    e(salu("s_lshr_b32", sHEAD, sT[0], 1)); e(salu("s_lshl_b32", sHEAD, sHEAD, 2)); e(salu("s_lshr_b32", sT[2], sT[1], 3)); e(salu("s_add_u32", sHEAD, sHEAD, sT[2]))
    e(salu("s_lshr_b32", sHH, sW, 1)); e(salu("s_and_b32", sHALF, sW, 1))
    e(salu("s_lshl_b32", sHEAD, sHEAD, 1)); e(salu("s_add_u32", sHEAD, sHEAD, sHH))
    e(salu("s_lshl_b32", sXld, sHH, 15))
    e(salu("s_lshl_b32", sWld, sHH, 16))
    e(salu("s_lshl_b32", sSPld, sHH, 14)); e(salu("s_add_u32", sSPld, sSPld, 128 * KB))
    e(valu("v_lshrrev_b32", vT0, 3, vLane)); e(valu("v_and_b32", vT1, 6, vT0)); e(valu("v_and_b32", vXd, 7, vLane))
    e(valu("v_xor_b32", vXd, vXd, vT1)); e(valu("v_lshlrev_b32", vXd, 4, vXd)); e(valu("v_lshl_add_u32", vXd, vT0, 11, vXd))
    e(salu("s_lshl_b32", sT[1], sHH, 14))
    e(valu("v_add_u32", vXd, sT[1], vXd))
    e(valu("v_lshrrev_b32", vT0, 4, vLane)); e(valu("v_lshlrev_b32", vT1, 2, vT0)); e(valu("v_and_b32", vWd, 15, vLane))
    e(valu("v_xor_b32", vWd, vWd, vT1)); e(valu("v_lshlrev_b32", vWd, 4, vWd)); e(valu("v_lshl_add_u32", vWd, vT0, 13, vWd))
    e(valu("v_lshlrev_b32", vT1, 1, vT0)); e(valu("v_and_b32", vKd, 15, vLane)); e(valu("v_xor_b32", vKd, vKd, vT1))
    e(valu("v_lshlrev_b32", vKd, 4, vKd)); e(valu("v_lshl_add_u32", vKd, vT0, 8, vKd))
    e(valu("v_xor_b32", vKd2, 0x1080, vKd))
    e(salu("s_mov_b32", sXoff, 0)); e(salu("s_mov_b32", sWoff, 0)); e(salu("s_mov_b32", sKlin, 0))
    e(salu("s_lshr_b32", sRot, "s2", 3)); e(salu("s_lshl_b32", sT[0], "s2", 2)); e(salu("s_add_u32", sRot, sRot, sT[0]))
    e(salu("s_lshl_b32", sT[0], sHH, 4)); e(salu("s_add_u32", sRot, sRot, sT[0])); e(salu("s_and_b32", sRot, sRot, 31)); e(salu("s_lshl_b32", sRot, sRot, 13))
    e(salu("s_mov_b32", sKoff, sRot))
    e(raw("s_waitcnt lgkmcnt(0)", "other"))
    if OPT.get("pstamp"): P += ST()
    e(salu("s_mul_i32", sT[0], sB, 425984))
    e(salu("s_add_u32", SRD_X[0], "s28", sT[0])); e(salu("s_addc_u32", SRD_X[1], "s29", 0)); e(salu("s_mov_b32", SRD_X[2], 425984)); e(salu("s_mov_b32", SRD_X[3], 0x20000))
    e(salu("s_lshl_b32", sT[0], sHEAD, 8))
    e(salu("s_add_u32", SRD_W[0], "s34", sT[0])); e(salu("s_addc_u32", SRD_W[1], "s35", 0)); e(salu("s_sub_u32", SRD_W[2], 8388608, sT[0])); e(salu("s_mov_b32", SRD_W[3], 0x20000))
    e(salu("s_lshl_b32", sT[0], sB, 5)); e(salu("s_add_u32", sT[0], sT[0], sHEAD)); e(salu("s_lshl_b32", sT[0], sT[0], 18))
    e(salu("s_add_u32", SRD_K[0], "s30", sT[0])); e(salu("s_addc_u32", SRD_K[1], "s31", 0)); e(salu("s_mov_b32", SRD_K[2], 262144)); e(salu("s_mov_b32", SRD_K[3], 0x20000))
    e(salu("s_add_u32", SRD_V[0], "s32", sT[0])); e(salu("s_addc_u32", SRD_V[1], "s33", 0)); e(salu("s_mov_b32", SRD_V[2], 262144)); e(salu("s_mov_b32", SRD_V[3], 0x20000))
    e(salu("s_mul_i32", sT[0], sB, 128 * 13 * KB))
    e(salu("s_add_u32", SRD_O[0], "s98", sT[0])); e(salu("s_addc_u32", SRD_O[1], "s99", 0)); e(salu("s_mov_b32", SRD_O[2], 128 * 13 * KB)); e(salu("s_mov_b32", SRD_O[3], 0x20000))
    e(scmp("s_cmp_eq_u32", sHALF, 0)); e(branch("s_cbranch_scc1", "L1a_start"))
    k0 = ST.k
    progs = []
    for NT, loader, tag in ((6, True, "b"), (7, False, "a")):
        ST.k = k0
        trace, prog = Role(NT, loader, tag, ST).build()
        trace = P + trace
        for _ in range(5):
            if auto_lgkm(trace) == 0: break
        else: raise RuntimeError("lgkm not stable")
        probs = check_hazards(expand(trace), name + tag)
        for p in probs: print(p)
        assert not probs
        progs.append(prog)
    END = [label("L1_end"), raw("s_endpgm")]
    if not fused:
        return text(expand(P + progs[0] + progs[1] + [label("L1_done")] + END))
    import k2
    return text(expand(P + progs[0] + progs[1] + END)) + k2.build_fused(stamp)

if __name__ == "__main__":
    s = build("k1")
    print(len(s.splitlines()), "lines")
```

```python
from fw import *
import os
from k1 import inter, KB, flat
OPT = dict(kv.split('=') for kv in os.environ.get('K2OPT', '').split(',') if kv)
sW, sHALF, sB, sNT = S(3), S(5), S(6), S(7)
SRD_O, SRD_W, SRD_C = S(8, 4), S(12, 4), S(16, 4)
sLd, sOoff, sWoff, sCnt = S(40), S(41), S(42), S(43)
sT = [S(46), S(47), S(48), S(49)]
vLane, vT0, vT1, vT2 = V(1), V(2), V(3), V(4)
vOl = V(5)
vWd = [V(6 + i) for i in range(4)]
vWr = [V(10 + i) for i in range(8)]
vSt = V(18)
vRa, vRb = V(19), V(20)
ACC0 = 32
def acc(t, f): return V(ACC0 + f * 28 + t * 4, 4)
def Wset(p, f): return A(192 + 32 * p + 4 * f, 4)
def Oset(p, t): return A(28 * p + 4 * t, 4)
OFLAG = OPT.get("oflag", "")
WFLAG = OPT.get("wflag", "")

def dma_w(slot):
    g = []
    for p in range(8):
        ops = []
        if p % 4 == 0:
            ops.append(salu("s_add_u32", "m0", sLd, slot * 8 * KB + (p >> 2) * 4096))
            ops.append(salu("s_add_u32", sT[0], sWoff, (p >> 2) * 32768))
        ops.append(dma(vWd[p & 3], SRD_W, sT[0], (p & 3) * KB, WFLAG))
        g.append(ops)
    return g
def advw(): return [salu("s_add_u32", sWoff, sWoff, 65536)]
def advo(): return [salu("s_add_u32", sOoff, sOoff, 13 * KB)]
def load_o(p, t, flag):
    ops = []
    if t % 4 == 0: ops.append(salu("s_add_u32", sT[1], sOoff, (t >> 2) * 4096))
    ops.append(bload(Oset(p, t), vOl, SRD_O, sT[1], (t & 3) * KB, flag))
    return ops
def reads_w(s):
    return [ds_r("ds_read_b64_tr_b16", Wset(s & 1, f)[2 * a:2 * a + 2], vWr[f], (s & 3) * 8 * KB + a * 4096) for f in range(8) for a in range(2)]

class Body:
    def __init__(self, NT, tag, ST, oflag=OFLAG, wsreg="s[32:33]"):
        self.NT, self.tag, self.ST, self.oflag, self.wsreg = NT, tag, ST, oflag, wsreg
    def kstep(self, s, vm, lw=True, lo=True, reads=True, extra=()):
        NT = self.NT
        mf = [mfma16(acc(t, f), Wset(s & 1, f), Oset(s & 1, t), acc(t, f)) for t in range(NT) for f in range(8)]
        n = len(mf)
        gaps = {}
        add = lambda g, ops: gaps.setdefault(g, []).extend(ops)
        if reads:
            for k, r in enumerate(reads_w(s + 1)): add(1 + 2 * k, [r])
        tailops = []
        if lw:
            for p, g in enumerate(dma_w((s + 3) & 3)): add(4 + p * (n - 6) // 8 // 2 * 2 + (2 if (4 + p * (n - 6) // 8 // 2 * 2) % 8 == 0 else 0), g)
            add(n - 1, advw())
        if lo:
            for t in range(NT - 1): add(8 * t + 8, load_o(s & 1, t, self.oflag))
            tailops = load_o(s & 1, NT - 1, self.oflag) + advo()
        return [wait(vm=vm, lgkm=0)] + inter(mf, gaps) + tailops + list(extra)
    def prefetch_w(self):
        return flat(dma_w(0)) + advw() + flat(dma_w(1)) + advw() + flat(dma_w(2)) + advw()
    def build(self):
        NT, ST, tag = self.NT, self.ST, self.tag
        per = 8 + NT
        P = []
        for s in range(2):
            for t in range(NT): P += load_o(s, t, self.oflag)
            P += advo()
        P.append(wait(vm=16 + 2 * NT))
        P += ST()
        P += reads_w(0)
        P.append(wait(vm=NT))
        L = [label(f"L2{tag}_loop")]
        for s in range(4):
            L += self.kstep(s, per, extra=[salu("s_add_u32", sCnt, sCnt, 1), scmp("s_cmp_lt_u32", sCnt, 7), branch("s_cbranch_scc1", f"L2{tag}_loop")] if s == 3 else ())
        T = ST() + self.kstep(0, per) + self.kstep(1, per, lw=False) + self.kstep(2, NT, lw=False, lo=False) + self.kstep(3, 0, lw=False, lo=False, reads=False)
        Rd = ST()
        k0 = ST.k
        e = Rd.append
        e(valu("v_add_u32", vRa, sLd, vOl))
        e(salu("s_xor_b32", sT[0], sLd, 2 << 15)); e(valu("v_add_u32", vRb, sT[0], vOl))
        e(nop(8))
        variants = []
        for w in range(4):
            o = [label(f"L2{tag}_red{w}")]
            hi, lo = w >> 1, w & 1
            keep = [4 * hi + k for k in range(4)]; send = [4 * (1 - hi) + k for k in range(4)]
            for i, f in enumerate(send):
                for t in range(NT): o.append(ds_w("ds_write_b128", vRa, acc(t, f), (i * NT + t) * KB))
            o += [wait(lgkm=0), barrier()]
            keep2 = keep[2 * lo:2 * lo + 2]; send2 = keep[2 * (1 - lo):2 * (1 - lo) + 2]
            order = [keep.index(f) for f in send2 + keep2]
            for i in order:
                for t in range(NT): o.append(ds_r("ds_read_b128", acc(t, send[i]), vRb, (i * NT + t) * KB))
            def addt(t, f, g): return [valu("v_pk_add_f32", acc(t, f)[2 * k:2 * k + 2], acc(t, f)[2 * k:2 * k + 2], acc(t, g)[2 * k:2 * k + 2]) for k in range(2)]
            for i in order[:2]:
                for t in range(NT): o += addt(t, keep[i], send[i])
            o += [wait(lgkm=0), barrier()]
            for i, f in enumerate(send2):
                for t in range(NT): o.append(ds_w("ds_write_b128", vRa, acc(t, f), (i * NT + t) * KB))
            for i in order[2:]:
                for t in range(NT): o += addt(t, keep[i], send[i])
            o.append(salu("s_xor_b32", sT[0], sLd, 1 << 15)); o.append(valu("v_add_u32", vRb, sT[0], vOl))
            o += [wait(lgkm=0), barrier()]
            for t in range(NT):
                for i, f in enumerate(keep2): o.append(ds_r("ds_read_b128", acc(t, send2[i]), vRb, (i * NT + t) * KB))
            for t in range(NT):
                dst = acc(t, send[0])
                for i, f in enumerate(keep2): o += addt(t, f, send2[i])
                for i, f in enumerate(keep2):
                    for k in range(2): o.append(valu("v_cvt_pk_bf16_f32", dst[2 * i + k], acc(t, f)[2 * k], acc(t, f)[2 * k + 1]))
                o.append(nop(2))
                o.append(permswap("v_permlane16_swap_b32", dst[0], dst[2])); o.append(permswap("v_permlane16_swap_b32", dst[1], dst[3]))
                o.append(salu("s_mov_b32", sT[0], t * 32768))
                o.append(bstore(dst, vSt, SRD_C, sT[0]))
            ST.k = k0
            o += ST()
            o += ST.dump(self.wsreg, sW, 65 << 20)
            o.append(raw("s_endpgm"))
            variants.append(o)
        for w in range(1, 4):
            e(scmp("s_cmp_eq_u32", sW, w)); e(branch("s_cbranch_scc1", f"L2{tag}_red{w}"))
        traces = [P + L + L + T + Rd + v for v in variants]
        prog = P + L + T + Rd + sum(variants, [])
        return traces, prog

def setup_ids():
    P = []; e = P.append
    e(salu("s_and_b32", sT[0], "s2", 7)); e(salu("s_lshr_b32", sT[1], "s2", 3))
    e(salu("s_lshr_b32", sB, sT[0], 1)); e(salu("s_lshl_b32", sB, sB, 2)); e(salu("s_and_b32", sT[2], sT[1], 3)); e(salu("s_add_u32", sB, sB, sT[2]))
    e(salu("s_lshr_b32", sHALF, sT[1], 2)); e(salu("s_and_b32", sHALF, sHALF, 1))
    e(salu("s_and_b32", sNT, sT[0], 1)); e(salu("s_lshl_b32", sNT, sNT, 2)); e(salu("s_lshr_b32", sT[2], sT[1], 3)); e(salu("s_add_u32", sNT, sNT, sT[2]))
    e(salu("s_lshl_b32", sLd, sW, 15))
    e(valu("v_lshlrev_b32", vOl, 4, vLane))
    e(valu("v_lshrrev_b32", vT0, 4, vLane)); e(valu("v_lshlrev_b32", vT1, 1, vT0)); e(valu("v_and_b32", vT2, 15, vLane))
    e(valu("v_xor_b32", vT2, vT2, vT1)); e(valu("v_lshlrev_b32", vT2, 4, vT2)); e(valu("v_lshl_add_u32", vWd[0], vT0, 11, vT2))
    e(valu("v_xor_b32", vWd[1], 128, vWd[0])); e(valu("v_add_u32", vWd[1], 7168, vWd[1]))
    e(valu("v_add_u32", vWd[2], 2 * 7168, vWd[0])); e(valu("v_add_u32", vWd[3], 2 * 7168, vWd[1]))
    e(salu("s_lshl_b32", sWoff, sW, 21))
    e(salu("s_mul_i32", sOoff, sW, 32 * 13 * KB)); e(salu("s_mul_i32", sT[0], sHALF, 7 * KB)); e(salu("s_add_u32", sOoff, sOoff, sT[0]))
    return P
def setup_srd(wo, out, ws):
    P = []; e = P.append
    e(salu("s_lshl_b32", sT[0], sNT, 8))
    e(salu("s_add_u32", SRD_W[0], wo[0], sT[0])); e(salu("s_addc_u32", SRD_W[1], wo[1], 0)); e(salu("s_sub_u32", SRD_W[2], 8388608, sT[0])); e(salu("s_mov_b32", SRD_W[3], 0x20000))
    e(salu("s_mul_i32", sT[0], sB, 128 * 13 * KB))
    e(salu("s_add_u32", SRD_O[0], ws[0], sT[0])); e(salu("s_addc_u32", SRD_O[1], ws[1], 0)); e(salu("s_mov_b32", SRD_O[2], 128 * 13 * KB)); e(salu("s_mov_b32", SRD_O[3], 0x20000))
    e(salu("s_mul_i32", sT[0], sB, 425984))
    e(salu("s_add_u32", SRD_C[0], out[0], sT[0])); e(salu("s_addc_u32", SRD_C[1], out[1], 0)); e(salu("s_mov_b32", SRD_C[2], 425984)); e(salu("s_mov_b32", SRD_C[3], 0x20000))
    return P
def setup_rest():
    P = []; e = P.append
    e(valu("v_lshrrev_b32", vT1, 2, vLane)); e(valu("v_lshlrev_b32", vWr[0], 8, vT1))
    e(valu("v_and_b32", vT1, 7, vT1)); e(valu("v_lshl_add_u32", vWr[0], vT1, 5, vWr[0]))
    e(valu("v_and_b32", vT1, 3, vLane)); e(valu("v_lshl_add_u32", vWr[0], vT1, 3, vWr[0]))
    e(valu("v_add_u32", vWr[0], sLd, vWr[0]))
    for f in range(1, 8): e(valu("v_xor_b32", vWr[f], f * 32, vWr[0]))
    e(valu("v_and_b32", vT1, 15, vLane)); e(valu("v_lshlrev_b32", vSt, 11, vT1))
    e(valu("v_and_b32", vT1, 1, vT0)); e(valu("v_lshl_add_u32", vSt, vT1, 5, vSt))
    e(valu("v_lshrrev_b32", vT1, 1, vT0)); e(valu("v_lshl_add_u32", vSt, vT1, 4, vSt))
    e(salu("s_mul_i32", sT[2], sHALF, 112 * 2048)); e(salu("s_lshl_b32", sT[3], sNT, 8)); e(salu("s_add_u32", sT[2], sT[2], sT[3]))
    e(salu("s_lshl_b32", sT[3], sW, 6)); e(salu("s_add_u32", sT[2], sT[2], sT[3]))
    e(valu("v_add_u32", vSt, sT[2], vSt))
    for r in range(ACC0, 256): e(valu("v_mov_b32", V(r), 0))
    e(salu("s_mov_b32", sCnt, 0))
    return P

def finish(name, pre, bodies):
    progs = []
    for b in bodies:
        traces, prog = b
        for tr in traces:
            for _ in range(5):
                if auto_lgkm(pre + tr) == 0: break
            else: raise RuntimeError("lgkm not stable")
        for tr in traces:
            probs = check_hazards(expand(pre + tr), name)
            for p in probs: print(p)
            assert not probs
        progs.append(prog)
    return progs

def build(name, stamp=False):
    ST = Stamps(stamp)
    P = []; e = P.append
    e(scmp("s_cmp_ge_u32", "s2", 256)); e(branch("s_cbranch_scc1", "L2_end"))
    P += ST()
    e(raw("s_load_dwordx4 s[28:31], s[0:1], 32", "smem"))
    e(raw("s_load_dwordx2 s[32:33], s[0:1], 56", "smem"))
    e(valu("v_lshrrev_b32", vT0, 6, "v0")); e(valu("v_and_b32", vLane, 63, "v0"))
    e(raw(f"v_readfirstlane_b32 {sW}, {vT0}", "valu", rd=[vT0], wr=[sW]))
    P += setup_ids()
    P += setup_rest()
    e(raw("s_waitcnt lgkmcnt(0)", "other"))
    P += setup_srd(S(28, 2), S(30, 2), S(32, 2))
    k0 = ST.k
    b7 = Body(7, "a", ST); P += b7.prefetch_w()
    e(scmp("s_cmp_eq_u32", sHALF, 1)); e(branch("s_cbranch_scc1", "L2b_start"))
    r7 = b7.build()
    ST.k = k0
    r6 = Body(6, "b", ST).build()
    progs = finish(name, P, [r7, r6])
    END = [label("L2_end"), raw("s_endpgm")]
    return text(expand(P + progs[0] + [label("L2b_start")] + progs[1] + END))
def build_fused(stamp):
    ST = Stamps(stamp)
    P = [label("L1_done")]; e = P.append
    P += ST()
    e(salu("s_lshr_b32", sT[0], "s7", 3)); e(salu("s_lshl_b32", sT[1], "s6", 2)); e(salu("s_add_u32", sT[0], sT[0], sT[1])); e(salu("s_lshl_b32", sT[0], sT[0], 2))
    e(valu("v_mov_b32", V(21), sT[0])); e(valu("v_mov_b32", V(22), 1))
    P += setup_ids()
    P += setup_srd(S(92, 2), S(94, 2), S(98, 2))
    e(wait(vm=0, lgkm=0)); e(barrier())
    e(scmp("s_cmp_lg_u32", sW, 0)); e(branch("s_cbranch_scc1", "L2_nosig"))
    e(raw("s_mov_b64 exec, 1", "salu"))
    e(raw("global_atomic_add v21, v22, s[96:97] sc1", "vmem_s", rd=["v21", "v22"]))
    e(raw("s_mov_b64 exec, -1", "salu"))
    e(label("L2_nosig"))
    b7 = Body(7, "a", ST, oflag="sc1", wsreg="s[98:99]")
    P += b7.prefetch_w()
    P += setup_rest()
    e(salu("s_lshl_b32", sT[1], sB, 2)); e(salu("s_add_u32", sT[0], sT[1], sW)); e(salu("s_lshl_b32", sT[0], sT[0], 2))
    e(valu("v_mov_b32", V(21), sT[0]))
    e(salu("s_mov_b32", sT[3], 0x100000))
    e(label("L2_poll"))
    e(raw("global_load_dword v22, v21, s[96:97] sc1", "vmem_l", rd=["v21"], wr=["v22"]))
    e(wait(vm=0))
    e(raw(f"v_readfirstlane_b32 {sT[2]}, v22", "valu", rd=["v22"], wr=[sT[2]]))
    e(salu("s_sub_u32", sT[3], sT[3], 1)); e(branch("s_cbranch_scc1", "L2_go"))
    e(scmp("s_cmp_ge_u32", sT[2], 4)); e(branch("s_cbranch_scc1", "L2_go"))
    e(raw("s_sleep 2", "other")); e(branch("s_branch", "L2_poll"))
    e(label("L2_go"))
    P += ST()
    k0 = ST.k
    e(scmp("s_cmp_eq_u32", sHALF, 1)); e(branch("s_cbranch_scc1", "L2b_start"))
    r7 = b7.build()
    ST.k = k0
    r6 = Body(6, "b", ST, oflag="sc1", wsreg="s[98:99]").build()
    progs = finish("k2f", P, [r7, r6])
    return text(expand(P + progs[0] + [label("L2b_start")] + progs[1]))

if __name__ == "__main__":
    print(len(build("k2").splitlines()))
```

```python
import sys, importlib
sys.path.insert(0, "gen")
import k1, k2
HEAD = """; Fused MHA block (Q-projection + cached attention + output projection) for gfx950.
; attn_kernel : one workgroup per (batch, head pair): Q^T = Wq^T x^T, S^T = K Q^T, softmax, O^T = V^T P^T -> ws (MFMA fragment order)
; @launch kernel=attn_kernel grid=(256,1,1) block=(256,1,1) lds=163840
; @launch kernel=oproj_kernel grid=(256,1,1) block=(256,1,1) lds=131072
.amdgcn_target "amdgcn-amd-amdhsa--gfx950"
"""
def khead(n): return f".text\n.globl {n}\n.p2align 8\n.type {n},@function\n{n}:\n"
def desc(n): return f""".section .rodata,"a"
.p2align 6
.amdhsa_kernel {n}
  .amdhsa_next_free_vgpr 512
  .amdhsa_next_free_sgpr 102
  .amdhsa_accum_offset 256
  .amdhsa_group_segment_fixed_size 0
  .amdhsa_kernarg_size 64
  .amdhsa_user_sgpr_count 2
  .amdhsa_user_sgpr_kernarg_segment_ptr 1
  .amdhsa_system_sgpr_workgroup_id_x 1
.end_amdhsa_kernel
"""
stamp = "--stamp" in sys.argv
args = [a for a in sys.argv[1:] if not a.startswith("--")]
out = args[0] if args else "standalone__mha_block_cached__near_ridge.s"
if "--fused" in sys.argv:
    KN = "standalone__mha_block_cached__near_ridge_kernel"
    H = HEAD.split("; attn_kernel")[0] + """; one workgroup per (batch, head pair): Q^T = Wq^T x^T, S^T = K Q^T, softmax, O^T = V^T P^T -> ws (MFMA fragment order);
; then, after a per-(batch, head group) hand-off through d_debug counters, out = O wo with a (112|96)x128 tile per workgroup.
; @launch grid=(256,1,1) block=(256,1,1) lds=163840
.amdgcn_target "amdgcn-amd-amdhsa--gfx950"
"""
    s = H + khead(KN) + k1.build("k1", stamp, True).replace("attn_kernel", KN) + desc(KN)
else:
  s = HEAD + khead("attn_kernel") + k1.build("k1", stamp) + khead("oproj_kernel") + k2.build("k2", stamp) + desc("attn_kernel") + desc("oproj_kernel")
open(out, "w").write(s)
print("wrote", out, len(s), "bytes")
```

```python
from fw import *
import struct, os
OPT = dict(kv.split('=') for kv in os.environ.get('K1OPT', '').split(',') if kv)
def f32(x): return "0x%08x" % struct.unpack("<I", struct.pack("<f", x))[0]
KB = 1024
QSCALE = 1.4426950408889634 * (128 ** -0.5)

sW, sHH, sHALF, sB, sHEAD = S(3), S(4), S(5), S(6), S(7)
SRD_X, SRD_W, SRD_K, SRD_V, SRD_O = S(8, 4), S(12, 4), S(16, 4), S(20, 4), S(24, 4)
sRot = S(39)
sXld, sWld, sSPld = S(40), S(41), S(42)
sXoff, sWoff, sKoff = S(43), S(44), S(45)
sT = [S(46), S(47), S(48), S(49)]
sCnt, sFB = S(50), S(51)
sScale = S(52, 2)
sOoff, sKlin = S(54), S(55)
sTmp2 = S(56, 2)
def kadv(): return [salu('s_add_u32', sKlin, sKlin, 8192), salu('s_xor_b32', sKoff, sKlin, sRot)]

vLane, vT0, vT1, vT2 = V(1), V(2), V(3), V(29)
vXd, vWd, vKd, vKd2 = V(4), V(5), V(6), V(31)
vXr = [V(7), V(8)]
vWr = [V(9 + i) for i in range(4)]
vKr = [V(13 + i) for i in range(4)]
vVr = [V(17 + i) for i in range(8)]
vKs = [V(25 + i) for i in range(4)]
vOst = V(30)
ACC0 = 32
def acc(t, f): return V(ACC0 + t * 32 + f * 4, 4)
def Qf(t, ds): return V(ACC0 + t * 32 + ds * 4, 4)
def fr(t, o, n): return V(ACC0 + t * 32 + 16 + o, n)
def Cm(t): return fr(t, 0, 4)
def Lr(t): return fr(t, 4, 1)
def Tm(t): return fr(t, 5, 1)
def Tm2(t): return fr(t, 6, 2)
SB = [fr(0, 8, 8), fr(1, 8, 8)]
PB = [fr(2, 8, 4), fr(2, 12, 4)]
def O6(dt): return fr(3 + (dt >> 1), 8 + 4 * (dt & 1), 4)
def Oacc(t, dt): return A(t * 32 + dt * 4, 4) if t < 6 else O6(dt)
def Kf(f): return A(192 + 4 * f, 4)
def Vf(dt): return A(224 + 4 * dt, 4)
def Wset(p, f): return A(112 + 32 * p + 4 * f, 4)
def Xset(p, t): return A(28 * p + 4 * t, 4)

def inter(mf, gaps):
    out = []
    assert all(0 <= k < len(mf) for k in gaps), (sorted(gaps), len(mf))
    order = lambda i: 0 if i.kind in ("salu", "wait", "barrier", "branch", "label", "smem", "nop") else (1 if i.kind in ("lds_r", "lds_w", "dma", "vmem_l", "vmem_s") else 2)
    for k, m in enumerate(mf):
        out.append(m)
        out.extend(sorted(gaps.get(k, []), key=order))
    return out
flat = lambda gs: [o for g in gs for o in g]

def wchunk(s): return (1 + 4 * (s & 1) + 2 * ((s >> 1) & 1)) * 8 * KB

def dma_w(s):
    g = []
    for p in range(8):
        ops = []
        if p % 4 == 0: ops.append(salu("s_add_u32", "m0", sWld, wchunk(s) + (p >> 2) * 4096))
        ops.append(salu("s_add_u32", sT[p & 1], sWoff, p * 32768 - (p & 3) * KB))
        ops.append(dma(vWd, SRD_W, sT[p & 1], (p & 3) * KB))
        g.append(ops)
    g[-1] = g[-1] + [salu("s_add_u32", sWoff, sWoff, 262144)]
    return g
def dma_x(par, lo, hi):
    g = []
    for T in range(lo, hi):
        fh, t = (0, T) if T < 7 else (1, T - 7)
        ops = [salu("s_add_u32", "m0", sXld, fh * 64 * KB + par * 16 * KB + t * KB), salu("s_add_u32", sT[T & 1], sXoff, T * 32768),
               dma(vXd, SRD_X, sT[T & 1], 0)]
        g.append(ops)
    if hi == 13: g[-1] = g[-1] + [salu("s_add_u32", sXoff, sXoff, 128)]
    return g
KVF = OPT.get("kvflag", "nt").replace("none", "")
def dma_kv(which, base, off):
    srd = SRD_K if which == "K" else SRD_V
    g = []
    for p in range(8):
        pre = [salu("s_add_u32", "m0", base, off + (p >> 2) * 4096)] if p % 4 == 0 else []
        g.append((pre, dma(vKd if p < 4 else vKd2, srd, sKoff, (p & 3) * KB, KVF)))
    return g
DEPTH = int(OPT.get("depth", "8"))
if DEPTH > 60: DEPTH = None
LEAD = int(OPT.get("lead", "3"))
def kv_groups(g, depth=None): return [pre + ([wait(vm=depth)] if depth is not None else []) + ([nop(1)] if pre and depth is None else []) + [d] for pre, d in g]

def reads_w(s):
    r = []
    for f in range(8):
        ds, T = f >> 1, f & 1
        for a in range(2):
            r.append(ds_r("ds_read_b64_tr_b16", Wset(s & 1, f)[2 * a:2 * a + 2], vWr[ds], wchunk(s) + a * KB + 8 * T))
    return r
def read_k(f, addr, off): return ds_r("ds_read_b128", Kf(f), addr[f & 3], off + (f >> 2) * 2048)
def read_v(dt, kt, addr, off): return ds_r("ds_read_b64_tr_b16", Vf(dt)[2 * kt:2 * kt + 2], addr[dt], off + kt * 2048)

def qk_block(t, sb, cinit=True):
    mf = []
    for kt in range(2):
        D = SB[sb][4 * kt:4 * kt + 4]
        for ds in range(4):
            mf.append(mfma16(D, Kf(4 * kt + ds), Qf(t, ds), (Cm(t) if cinit else 0) if ds == 0 else D))
    return mf
def pv_block(t, sb, first=False):
    return [mfma16(Oacc(t, dt), Vf(dt), PB[sb], 0 if first else Oacc(t, dt)) for dt in range(8)]
def E(sb, i): return valu("v_exp_f32", SB[sb][i], SB[sb][i])
def AD(t, sb, i): return valu("v_add_f32", Lr(t), Lr(t), SB[sb][i])
def CV(sb, k): return valu("v_cvt_pk_bf16_f32", PB[sb][k], SB[sb][2 * k], SB[sb][2 * k + 1])
def sm_half(t, sb, h):
    o = 4 * h
    return {0: [AD(t, sb, o)], 1: [E(sb, o + 1)], 2: [AD(t, sb, o + 1), CV(sb, 2 * h)], 3: [E(sb, o + 2)],
            4: [AD(t, sb, o + 2)], 5: [E(sb, o + 3)], 6: [AD(t, sb, o + 3), CV(sb, 2 * h + 1)]}

def xgroup_reduce(op, regs, tmps):
    o = []
    for sw in ("v_permlane16_swap_b32", "v_permlane32_swap_b32"):
        for r, t in zip(regs, tmps): o.append(valu("v_mov_b32", t, r))
        o.append(nop(2))
        for r, t in zip(regs, tmps): o.append(permswap(sw, r, t))
        o.append(nop(1))
        for r, t in zip(regs, tmps): o.append(valu(op, r, r, t))
    return o

class Role:
    def __init__(self, NT, loader, tag, ST):
        self.NT, self.loader, self.tag, self.ST = NT, loader, tag, ST
    def L(self, n): return f"L1{self.tag}_{n}"
    def reads_x(self, a):
        return [ds_r("ds_read_b128", Xset((a & 1) * 2 + sp, t), vXr[sp], (a & 1) * 16 * KB + t * KB) for sp in range(2) for t in range(self.NT)]
    def kstep(self, s, vm, reads, dmas, extra=None, vma=None):
        NT = self.NT
        a = s >> 1
        mf = [mfma16(acc(t, f), Wset(s & 1, f), Xset((a & 1) * 2 + (s & 1), t), acc(t, f)) for t in range(NT) for f in range(8)]
        gaps = {}
        n = len(mf)
        span = n - 10
        for i, r in enumerate(reads): gaps.setdefault(i * span // max(len(reads), 1), []).append(r)
        if OPT.get("noqdma") and not any("s[16:19]" in str(o) for g in dmas for o in g): dmas = [[o for o in g if o.kind != "dma"] for g in dmas]
        if OPT.get("noqread"): gaps = {}
        if self.loader:
            pos = [1 + i * (n - 3) // max(len(dmas), 1) for i in range(len(dmas))]
            assert len(set(pos)) == len(pos)
            for k, g in zip(pos, dmas): gaps.setdefault(k, []).extend(g)
        for k, ops in (extra or {}).items(): gaps.setdefault(k, []).extend(ops)
        head = [wait(vm=vm if self.loader else vma, lgkm=0)] + ([] if OPT.get("noqbar") else [barrier()])
        return head + inter(mf, gaps)
    def period(self, j, first=False, exit_label=None, wot=False):
        NT = self.NT
        out = []
        slot_cur = (j - 1) & 3
        slot_nxt = j & 3
        H = 2 * NT
        dm = []
        dmpos = {}
        advpos = None
        if LEAD == 4:
            if self.loader and not first:
                dm = dma_kv("K", sWld, slot_cur * 8 * KB) + dma_kv("V", sWld, 32 * KB + slot_cur * 8 * KB)
                slots = [(hs, g) for hs in range(2, H) for g in (3, 7)][:-1]
                advpos = (H - 1, 5)
        elif self.loader:
            dm = dma_kv("V", sWld, 32 * KB + ((j + 2) & 3) * 8 * KB) + dma_kv("K", sWld, slot_cur * 8 * KB)
            slots = [(hs, g) for hs in range(H) for g in (3, 7)]
        for i, x in enumerate(dm):
            hs, g = slots[i * len(slots) // len(dm)]
            dmpos.setdefault(hs, []).append((g, x))
            if LEAD != 4 and i == 8:
                assert g == 3 and slots[7 * len(slots) // len(dm)] <= (hs - 1, 3) and hs >= 2
                advpos = (hs - 1, 5)
        for hs in range(H):
            t = hs >> 1
            sb = (j * NT + t) & 1
            tn = (t + 1) % NT
            if hs % 2 == 0:
                mf = qk_block(tn, sb ^ 1); gaps = sm_half(t, sb, 1); gaps[7] = [E(sb ^ 1, 0)]
            else:
                mf = pv_block(t, sb, first); gaps = sm_half(tn, sb ^ 1, 0); gaps[7] = [E(sb ^ 1, 4)]
            def add(g, ops): gaps.setdefault(g, []).extend(ops)
            if hs == 0 and not first:
                for g in range(8): add(g, [read_v(4 + (g >> 1), g & 1, vVr, slot_cur * 8 * KB)])
            if hs == H - 1:
                for g in range(8): add(g, [read_v(g >> 1, g & 1, vVr, slot_nxt * 8 * KB)])
            if hs in (H - 4, H - 3):
                for q in range(4): add(2 * q, [read_k(4 * (hs - (H - 4)) + q, vKr, slot_nxt * 8 * KB)])
            if hs == 1:
                add(7, ([wait(vm=(48 if first else 32) if LEAD == 4 else 16)] if self.loader else []) + [barrier()])
            if dm:
                for gi, (pre, d) in dmpos.get(hs, []):
                    add(gi - 2, pre)
                    if DEPTH is not None: add(gi - 1, [wait(vm=DEPTH)])
                    add(gi, [d])
            if wot and hs in (4, 6):
                add(1, [scmp("s_cmp_eq_u32", sCnt, 7)]); add(2, [salu("s_cselect_b32", sT[0], sXoff if hs == 4 else sWoff, 0x1000000)])
                add(4, [bload(vKd2, vWd, SRD_W, sT[0])])
            if advpos and hs == advpos[0]: add(advpos[1], kadv()[:1]); add(advpos[1] + 1, kadv()[1:])
            if exit_label and hs == H - 3:
                add(7, [scmp("s_cmp_eq_u32", sCnt, 7)])
            out += inter(mf, gaps)
            if exit_label and hs == H - 3:
                out.append(branch("s_cbranch_scc1", exit_label))
        return out

    def build(self):
        NT, ST, L = self.NT, self.ST, self.L
        ld = self.loader
        P = [label(L("start"))]
        e = P.append
        if ld:
            P += flat(dma_w(0)) + flat(dma_x(0, 0, 13)) + flat(dma_w(1))
        P += common_addr()
        for r in range(ACC0, ACC0 + 32 * NT): e(valu("v_mov_b32", V(r), 0))
        if ld:
            e(salu("s_add_u32", sXoff, sXoff, 128)); e(salu("s_add_u32", sWoff, sWoff, 262144))
            P += kadv()
            e(wait(vm=8))
        else:
            e(salu("s_mov_b32", sXoff, 128)); e(salu("s_mov_b32", sWoff, 2 * 262144))
            P += flat(dma_x(1, 0, 13)) + flat(dma_w(2))
        e(barrier())
        P += ST()
        P += reads_w(0) + self.reads_x(0)
        if ld:
            P += flat(dma_w(3)) + [wait(vm=8)]
        else:
            for k in range(4): e(salu("s_mov_b32", SRD_X[k], SRD_K[k] if k < 3 else 0x20000))
            e(salu("s_mov_b32", sXld, sSPld))
            e(valu("v_mov_b32", vXd, vKd))
            e(valu("v_lshlrev_b32", vWd, 7, vLane))
            if OPT.get("codepf", "1") == "1": P += code_touch()
            P += touch_wo_setup()
        def qloop(name, last, bg):
            QL = [label(L(name))]
            for s in range(4):
                reads = reads_w(s + 1) + (self.reads_x((s + 1) >> 1) if s & 1 else [])
                dmas = (dma_x(s >> 1, 0, 7) if s % 2 == 0 else dma_x(s >> 1, 7, 13)) + dma_w(s)
                extra = bg(s) if not ld else {}
                if s == 3: extra.update({8 * NT - 2: [salu("s_add_u32", sCnt, sCnt, 1)], 8 * NT - 1: [scmp("s_cmp_lt_u32", sCnt, last)]})
                QL += self.kstep(s, 29 if s % 2 == 0 else 23, reads, dmas, extra, vma=1 if (s == 1 and name == "qloopA") else None)
            QL.append(branch("s_cbranch_scc1", L(name)))
            return QL
        def bgA(s):
            x = {3: [dma(vXd, SRD_X, sKoff, s * KB, KVF)]}
            if s == 0: x[1] = [salu("s_mov_b32", "m0", sXld)]
            if s == 3:
                x[5] = [salu("s_add_u32", sXld, sXld, 4096), valu("v_xor_b32", vXd, 0x1080, vXd)]
                x[7] = [scmp("s_cmp_eq_u32", sCnt, 1)]
                x[8] = [salu("s_cselect_b32", SRD_X[0], SRD_V[0], SRD_X[0])]
                x[9] = [salu("s_cselect_b32", SRD_X[1], SRD_V[1], SRD_X[1])]
            return x
        def touch(w): return bload(vKd2, vWd, SRD_K if w == "K" else SRD_V, sKoff, 0, OPT.get("pfflag", ""))
        NPF = int(OPT.get("npf", "0"))
        def bgB(s):
            if not NPF: return {}
            if s == 0: return {1: kadv()[:1], 2: kadv()[1:], 3: [touch("K")]}
            if s == 2: return {3: [touch("V")]}
            return {}
        def bgT(s):
            if NPF < 2 or ld: return {}
            if s % 2 == 0: return {1: kadv()[:1], 2: kadv()[1:], 3: [touch("K")]}
            return {3: [touch("V")]}
        if ld:
            QL = qloop("qloop", 7, None)
            QLt = QL + QL
        else:
            QA, QB = qloop("qloopA", 4, bgA), qloop("qloopB", 7, bgB)
            QL = QA + QB
            QLt = QA + QA + QB + QB
        QT = ST()
        kvg = lambda w, off: kv_groups(dma_kv(w, sWld, off), DEPTH)
        vVs = [V(0), vT0, vT1, vT2] + vKs
        spv = [salu("s_sub_u32", sT[2], sSPld, sWld), salu("s_sub_u32", sT[2], sT[2], 24 * KB)]
        def mrg(a, b):
            for k, v in b.items(): a.setdefault(k, []).extend(v)
            return a
        if LEAD == 4: qd = [kvg("K", 8 * i * KB) + kvg("V", (32 + 8 * i) * KB) + [kadv()] for i in range(4)]; qw = (24, 32)
        else: qd = [kvg("K", 0), kvg("V", 32 * KB) + [kadv()], kvg("K", 8 * KB), kvg("V", 40 * KB) + [kadv()]]; qw = (16, 16)
        QT += self.kstep(0, 29, reads_w(1), qd[0], bgT(0), vma=6 if NPF else 0)
        QT += self.kstep(1, qw[0], reads_w(2) + self.reads_x(1), qd[1], bgT(1))
        QT += self.kstep(2, qw[1], [read_k(f, vKs, 0) for f in range(8)] + reads_w(3), qd[2],
                         mrg(bgT(2), {30: spv, **{32 + dt: [valu("v_add_u32", vVs[dt], sT[2], vVr[dt])] for dt in range(8)}}))
        QT += self.kstep(3, None, [read_v(dt, kt, vVs, 0) for dt in range(8) for kt in range(2)], qd[3], bgT(3))
        tk = kvg("K", 16 * KB) if (ld and LEAD != 4) else []
        T = ST()
        e = T.append
        def conv(t):
            o = []
            for ds in range(4):
                src = V(ACC0 + t * 32 + ds * 8, 8)
                for k in range(4): o.append(valu("v_pk_mul_f32", src[2 * k:2 * k + 2], src[2 * k:2 * k + 2], sScale))
                for k in range(4): o.append(valu("v_cvt_pk_bf16_f32", Qf(t, ds)[k], src[2 * k], src[2 * k + 1]))
            return o
        def prepass(t): return [mfma16(Cm(t), Kf(ds), Qf(t, ds), 0 if ds == 0 else Cm(t)) for ds in range(4)]
        for t in range(NT):
            c = conv(t)
            if t:
                pp = prepass(t - 1)
                c = c[:4] + pp + c[4:]
            for _ in range(2 if t < 2 else 1):
                if tk: c = tk.pop(0) + c if _ == 0 else c[:18] + tk.pop(0) + c[18:]
            T += c
        e(nop(2))
        T += prepass(NT - 1)
        for t in range(NT): e(valu("v_mov_b32", Lr(t), 0))
        e(nop(2))
        for t in range(NT): e(valu("v_max3_f32", Cm(t)[0], Cm(t)[0], Cm(t)[1], Cm(t)[2]))
        for t in range(NT): e(valu("v_max_f32", Cm(t)[0], Cm(t)[0], Cm(t)[3]))
        T += xgroup_reduce("v_max_f32", [Cm(t)[0] for t in range(NT)], [Cm(t)[1] for t in range(NT)])
        for k in (3, 2, 1, 0): e(valu("v_sub_f32", Cm(0)[k], 0, Cm(0)[0]))
        e(salu("s_mov_b32", sCnt, 0)); e(nop(1))
        rest = [valu("v_sub_f32", Cm(t)[k], 0, Cm(t)[0]) for t in range(1, NT) for k in (3, 2, 1, 0)]
        T += inter(qk_block(0, 0), {k: rest[3 * k:3 * k + 3] for k in range(8)})
        e(nop(4))
        for i in range(4): e(E(0, i))
        e(E(0, 4))
        for i in range(4): e(AD(0, 0, i))
        e(CV(0, 0)); e(CV(0, 1))
        A0 = ST() + self.period(0, first=True)
        AL = [label(L("aloop"))] + self.period(1, wot=not ld) + self.period(2)
        ALa = self.period(3, exit_label=L("tail"))
        cut = max(i for i, x in enumerate(ALa) if x.kind == "branch") + 1
        ALb = self.period(4) + [salu("s_add_u32", sCnt, sCnt, 1), branch("s_branch", L("aloop"))]
        TL = [label(L("tail"))] + ST()
        sb = (3 * NT + NT - 1) & 1
        g = sm_half(NT - 1, sb, 1)
        for k in (1, 3, 5): TL += g[k]
        TL.append(nop(1))
        for k in (0, 2, 4, 6): TL += g[k]
        TL.append(nop(2))
        TL += pv_block(NT - 1, sb)
        EP = [label(L("epi"))]
        e = EP.append
        EP += xgroup_reduce("v_add_f32", [Lr(t) for t in range(NT)], [Tm(t) for t in range(NT)])
        vChk, vChl = vT0, vT1
        e(valu("v_mov_b32", vChk, 0)); e(valu("v_mov_b32", vChl, 0))
        for t in range(0, NT - 1, 2): e(valu("v_maximum3_f32", vChl, Lr(t), Lr(t + 1), vChl))
        if NT % 2: e(valu("v_maximum3_f32", vChl, Lr(NT - 1), Lr(NT - 1), vChl))
        for t in range(NT): e(valu("v_rcp_f32", Tm2(t)[0], Lr(t)))
        outs = [PB[0], PB[1], V(8, 4), V(24, 4)]
        n = 0
        for t in range(NT):
            for ds in range(4):
                st = SB[n & 1]; o = outs[n % 2]; n += 1
                if t < 6:
                    for k in range(8): e(valu("v_accvgpr_read_b32", st[k], A(t * 32 + ds * 8 + k)))
                    src = st
                else:
                    src = V(O6(2 * ds).b, 8)
                for k in range(4): e(valu("v_maximum3_f32", vChk, f"|{src[2*k]}|", f"|{src[2*k+1]}|", vChk))
                for k in range(4): e(valu("v_pk_mul_f32", st[2 * k:2 * k + 2], src[2 * k:2 * k + 2], Tm2(t), extra="op_sel_hi:[1,0]"))
                for k in range(4): e(valu("v_cvt_pk_bf16_f32", o[k], st[2 * k], st[2 * k + 1]))
                e(salu("s_add_u32", sT[0], sOoff, (ds * 13 + t) * KB))
                e(bstore(o, vOst, SRD_O, sT[0], 0, "sc1" if FUSED else ""))
        EP += ST()
        EP += ST.dump("s[98:99]", sW, 64 << 20)
        e(scmp("s_cmp_lg_u32", sFB, 0)); e(branch("s_cbranch_scc1", "L1_done"))
        e(salu("s_mov_b32", sT[0], 0x7f800000)); e(salu("s_mov_b32", sT[1], f32(2.0 ** 100)))
        e(raw(f"v_cmp_ngt_f32 vcc, {sT[0]}, {vChk}", "valu", rd=[sT[0], vChk], wr=["vcc"]))
        e(raw(f"v_cmp_ngt_f32 {sTmp2}, {sT[1]}, {vChl}", "valu", rd=[sT[1], vChl], wr=[sTmp2]))
        e(nop(4))
        e(raw(f"s_or_b64 vcc, vcc, {sTmp2}", "salu", rd=["vcc", sTmp2], wr=["vcc", "scc"]))
        e(branch("s_cbranch_scc0", "L1_done"))
        FB = []
        e = FB.append
        e(wait(vm=0, lgkm=0))
        e(salu("s_mov_b32", sFB, 1))
        e(valu("v_xor_b32", vKd2, 0x1080, vKd))
        sBuf = sXld
        e(salu("s_lshl_b32", sBuf, sW, 13)); e(salu("s_add_u32", sBuf, sBuf, 128 * KB))
        e(salu("s_sub_u32", sT[0], sBuf, sWld))
        for ds in range(4): e(valu("v_add_u32", vKr[ds], sT[0], vKr[ds]))
        e(salu("s_sub_u32", sT[0], sT[0], 32 * KB))
        for dt in range(8): e(valu("v_add_u32", vVr[dt], sT[0], vVr[dt]))
        def fb_load(w): return flat(kv_groups(dma_kv(w, sBuf, 0))) + [wait(vm=0)]
        for t in range(NT): e(valu("v_mov_b32", Lr(t), "0xff800000"))
        e(salu("s_mov_b32", sKoff, 0))
        F1 = [label(L("fb1"))] + fb_load("K") + [read_k(f, vKr, 0) for f in range(8)] + [wait(lgkm=0)]
        for t in range(NT):
            F1 += qk_block(t, t & 1, cinit=False) + [nop(8)]
            for k in range(4): F1.append(valu("v_max3_f32", Lr(t), Lr(t), SB[t & 1][2 * k], SB[t & 1][2 * k + 1]))
        F1 += [salu("s_add_u32", sKoff, sKoff, 8192), scmp("s_cmp_lt_u32", sKoff, 262144), branch("s_cbranch_scc1", L("fb1"))]
        F2 = xgroup_reduce("v_max_f32", [Lr(t) for t in range(NT)], [Tm(t) for t in range(NT)])
        for t in range(NT):
            for k in range(4): F2.append(valu("v_sub_f32", Cm(t)[k], 0, Lr(t)))
        for t in range(NT): F2.append(valu("v_mov_b32", Lr(t), 0))
        for r in range(192): F2.append(valu("v_accvgpr_write_b32", A(r), 0))
        if NT > 6:
            for dt in range(8):
                for k in range(4): F2.append(valu("v_mov_b32", O6(dt)[k], 0))
        F2.append(salu("s_mov_b32", sKoff, 0))
        F3 = [label(L("fb2"))] + fb_load("K") + [read_k(f, vKr, 0) for f in range(8)] + [wait(lgkm=0)]
        F3 += fb_load("V") + [read_v(dt, kt, vVr, 0) for dt in range(8) for kt in range(2)] + [wait(lgkm=0)]
        for t in range(NT):
            sb = t & 1
            F3 += qk_block(t, sb) + [nop(8)] + [E(sb, i) for i in range(8)] + [nop(1)] + [AD(t, sb, i) for i in range(8)] + [CV(sb, k) for k in range(4)] + [nop(2)] + pv_block(t, sb)
        F3 += [salu("s_add_u32", sKoff, sKoff, 8192), scmp("s_cmp_lt_u32", sKoff, 262144), branch("s_cbranch_scc1", L("fb2"))]
        F4 = [nop(8), branch("s_branch", L("epi"))]
        body = AL + ALa + ALb
        trace = P + QLt + QT + T + A0 + body + body + AL + ALa[:cut] + TL + EP + FB + F1 + F1 + F2 + F3 + F3 + F4 + EP
        prog = P + QL + QT + T + A0 + body + TL + EP + FB + F1 + F2 + F3 + F4
        return trace, prog

def touch_wo_setup():
    o = []
    e = o.append
    srd = SRD_W
    e(salu("s_mov_b32", srd[0], "s92")); e(salu("s_mov_b32", srd[1], "s93")); e(salu("s_mov_b32", srd[2], 8388608)); e(salu("s_mov_b32", srd[3], 0x20000))
    e(salu("s_lshl_b32", sXoff, "s2", 15)); e(salu("s_lshl_b32", sT[1], sHH, 14)); e(salu("s_add_u32", sXoff, sXoff, sT[1]))
    e(salu("s_add_u32", sWoff, sXoff, 8192))
    return o

def code_touch():
    o = []
    e = o.append
    srd = SRD_W
    e(raw("s_getpc_b64 s[56:57]", "salu", wr=[sTmp2]))
    e(raw("L1_pc:", "label"))
    e(raw("s_sub_u32 s56, s56, L1_pc-attn_kernel", "salu", rd=[sTmp2], wr=[sTmp2, "scc"]))
    e(raw("s_subb_u32 s57, s57, 0", "salu", rd=[sTmp2], wr=[sTmp2, "scc"]))
    e(salu("s_lshr_b32", sT[0], "s2", 3)); e(salu("s_lshl_b32", sT[0], sT[0], 1)); e(salu("s_add_u32", sT[0], sT[0], sHH)); e(salu("s_lshl_b32", sT[0], sT[0], 10))
    e(salu("s_add_u32", srd[0], "s56", sT[0])); e(salu("s_addc_u32", srd[1], "s57", 0)); e(salu("s_mov_b32", srd[2], 1024)); e(salu("s_mov_b32", srd[3], 0x20000))
    e(bload(vKd2, vWd, srd, 0))
    return o

def common_addr():
    P = []
    e = P.append
    vRho = vT2
    e(valu("v_lshrrev_b32", vT0, 4, vLane))
    e(valu("v_and_b32", vRho, 15, vLane))
    e(valu("v_and_b32", vT1, 6, vRho)); e(valu("v_xor_b32", vT1, vT1, vT0)); e(valu("v_lshlrev_b32", vXr[0], 4, vT1))
    e(valu("v_and_b32", vT1, 7, vRho)); e(valu("v_lshl_add_u32", vXr[0], vT1, 7, vXr[0]))
    e(valu("v_lshrrev_b32", vT1, 3, vRho)); e(valu("v_lshl_add_u32", vXr[0], vT1, 15, vXr[0]))
    e(salu("s_lshl_b32", sT[0], sHALF, 16)); e(valu("v_add_u32", vXr[0], sT[0], vXr[0]))
    e(valu("v_xor_b32", vXr[1], 64, vXr[0]))
    e(valu("v_lshlrev_b32", vWr[0], 4, vRho)); e(valu("v_lshrrev_b32", vT1, 2, vRho)); e(valu("v_lshl_add_u32", vWr[0], vT1, 8, vWr[0]))
    e(valu("v_lshl_add_u32", vWr[0], vT0, 11, vWr[0]))
    e(valu("v_add_u32", vWr[0], sWld, vWr[0]))
    for ds in range(1, 4): e(valu("v_xor_b32", vWr[ds], ds * 64, vWr[0]))
    def kappa(dst, rho, tmp):
        e(valu("v_and_b32", dst, 3, rho)); e(valu("v_lshrrev_b32", tmp, 3, rho)); e(valu("v_lshl_add_u32", dst, tmp, 2, dst))
        e(valu("v_and_b32", tmp, 4, rho)); e(valu("v_lshl_add_u32", dst, tmp, 2, dst))
    kappa(vKr[0], vRho, vT1)
    e(valu("v_lshlrev_b32", vKr[0], 8, vKr[0]))
    e(valu("v_and_b32", vT1, 7, vRho)); e(valu("v_lshlrev_b32", vT1, 1, vT1)); e(valu("v_xor_b32", vT1, vT1, vT0))
    e(valu("v_lshl_add_u32", vKr[0], vT1, 4, vKr[0])); e(valu("v_add_u32", vKr[0], sWld, vKr[0]))
    for ds in range(1, 4): e(valu("v_xor_b32", vKr[ds], ds * 64, vKr[0]))
    e(salu("s_sub_u32", sT[2], sSPld, sWld))
    for ds in range(4): e(valu("v_add_u32", vKs[ds], sT[2], vKr[ds]))
    e(valu("v_lshrrev_b32", vRho, 2, vLane))
    kappa(vVr[0], vRho, vT1)
    e(valu("v_lshlrev_b32", vVr[0], 8, vVr[0]))
    e(valu("v_and_b32", vT1, 7, vRho)); e(valu("v_lshl_add_u32", vVr[0], vT1, 5, vVr[0]))
    e(valu("v_and_b32", vT1, 3, vLane)); e(valu("v_lshl_add_u32", vVr[0], vT1, 3, vVr[0]))
    e(salu("s_add_u32", sT[1], sWld, 32 * KB)); e(valu("v_add_u32", vVr[0], sT[1], vVr[0]))
    for dt in range(1, 8): e(valu("v_xor_b32", vVr[dt], dt * 32, vVr[0]))
    e(valu("v_lshlrev_b32", vOst, 4, vLane))
    e(salu("s_mul_i32", sOoff, sHEAD, 52 * KB)); e(salu("s_mul_i32", sT[0], sHALF, 7 * KB)); e(salu("s_add_u32", sOoff, sOoff, sT[0]))
    e(salu("s_mov_b32", sScale[0], f32(QSCALE))); e(salu("s_mov_b32", sScale[1], f32(QSCALE)))
    e(salu("s_mov_b32", sFB, 0)); e(salu("s_mov_b32", sCnt, 0))
    return P

def build(name, stamp=False, fused=False):
    global FUSED
    FUSED = fused
    ST = Stamps(stamp)
    P = []
    e = P.append
    e(scmp("s_cmp_ge_u32", "s2", 256)); e(branch("s_cbranch_scc1", "L1_end"))
    P += ST()
    e(raw("s_load_dwordx8 s[28:35], s[0:1], 0", "smem"))
    e(raw("s_load_dwordx8 s[92:99], s[0:1], 32", "smem"))
    e(valu("v_lshrrev_b32", vT0, 6, "v0")); e(valu("v_and_b32", vLane, 63, "v0"))
    e(raw(f"v_readfirstlane_b32 {sW}, {vT0}", "valu", rd=[vT0], wr=[sW]))
    e(salu("s_and_b32", sT[0], "s2", 7)); e(salu("s_lshr_b32", sT[1], "s2", 3))
    e(salu("s_and_b32", sB, sT[0], 1)); e(salu("s_lshl_b32", sB, sB, 3)); e(salu("s_and_b32", sT[2], sT[1], 7)); e(salu("s_add_u32", sB, sB, sT[2]))
    e(salu("s_lshr_b32", sHEAD, sT[0], 1)); e(salu("s_lshl_b32", sHEAD, sHEAD, 2)); e(salu("s_lshr_b32", sT[2], sT[1], 3)); e(salu("s_add_u32", sHEAD, sHEAD, sT[2]))
    e(salu("s_lshr_b32", sHH, sW, 1)); e(salu("s_and_b32", sHALF, sW, 1))
    e(salu("s_lshl_b32", sHEAD, sHEAD, 1)); e(salu("s_add_u32", sHEAD, sHEAD, sHH))
    e(salu("s_lshl_b32", sXld, sHH, 15))
    e(salu("s_lshl_b32", sWld, sHH, 16))
    e(salu("s_lshl_b32", sSPld, sHH, 14)); e(salu("s_add_u32", sSPld, sSPld, 128 * KB))
    e(valu("v_lshrrev_b32", vT0, 3, vLane)); e(valu("v_and_b32", vT1, 6, vT0)); e(valu("v_and_b32", vXd, 7, vLane))
    e(valu("v_xor_b32", vXd, vXd, vT1)); e(valu("v_lshlrev_b32", vXd, 4, vXd)); e(valu("v_lshl_add_u32", vXd, vT0, 11, vXd))
    e(salu("s_lshl_b32", sT[1], sHH, 14))
    e(valu("v_add_u32", vXd, sT[1], vXd))
    e(valu("v_lshrrev_b32", vT0, 4, vLane)); e(valu("v_lshlrev_b32", vT1, 2, vT0)); e(valu("v_and_b32", vWd, 15, vLane))
    e(valu("v_xor_b32", vWd, vWd, vT1)); e(valu("v_lshlrev_b32", vWd, 4, vWd)); e(valu("v_lshl_add_u32", vWd, vT0, 13, vWd))
    e(valu("v_lshlrev_b32", vT1, 1, vT0)); e(valu("v_and_b32", vKd, 15, vLane)); e(valu("v_xor_b32", vKd, vKd, vT1))
    e(valu("v_lshlrev_b32", vKd, 4, vKd)); e(valu("v_lshl_add_u32", vKd, vT0, 8, vKd))
    e(valu("v_xor_b32", vKd2, 0x1080, vKd))
    e(salu("s_mov_b32", sXoff, 0)); e(salu("s_mov_b32", sWoff, 0)); e(salu("s_mov_b32", sKlin, 0))
    e(salu("s_lshr_b32", sRot, "s2", 3)); e(salu("s_lshl_b32", sT[0], "s2", 2)); e(salu("s_add_u32", sRot, sRot, sT[0]))
    e(salu("s_lshl_b32", sT[0], sHH, 4)); e(salu("s_add_u32", sRot, sRot, sT[0])); e(salu("s_and_b32", sRot, sRot, 31)); e(salu("s_lshl_b32", sRot, sRot, 13))
    e(salu("s_mov_b32", sKoff, sRot))
    e(raw("s_waitcnt lgkmcnt(0)", "other"))
    if OPT.get("pstamp"): P += ST()
    e(salu("s_mul_i32", sT[0], sB, 425984))
    e(salu("s_add_u32", SRD_X[0], "s28", sT[0])); e(salu("s_addc_u32", SRD_X[1], "s29", 0)); e(salu("s_mov_b32", SRD_X[2], 425984)); e(salu("s_mov_b32", SRD_X[3], 0x20000))
    e(salu("s_lshl_b32", sT[0], sHEAD, 8))
    e(salu("s_add_u32", SRD_W[0], "s34", sT[0])); e(salu("s_addc_u32", SRD_W[1], "s35", 0)); e(salu("s_sub_u32", SRD_W[2], 8388608, sT[0])); e(salu("s_mov_b32", SRD_W[3], 0x20000))
    e(salu("s_lshl_b32", sT[0], sB, 5)); e(salu("s_add_u32", sT[0], sT[0], sHEAD)); e(salu("s_lshl_b32", sT[0], sT[0], 18))
    e(salu("s_add_u32", SRD_K[0], "s30", sT[0])); e(salu("s_addc_u32", SRD_K[1], "s31", 0)); e(salu("s_mov_b32", SRD_K[2], 262144)); e(salu("s_mov_b32", SRD_K[3], 0x20000))
    e(salu("s_add_u32", SRD_V[0], "s32", sT[0])); e(salu("s_addc_u32", SRD_V[1], "s33", 0)); e(salu("s_mov_b32", SRD_V[2], 262144)); e(salu("s_mov_b32", SRD_V[3], 0x20000))
    e(salu("s_mul_i32", sT[0], sB, 128 * 13 * KB))
    e(salu("s_add_u32", SRD_O[0], "s98", sT[0])); e(salu("s_addc_u32", SRD_O[1], "s99", 0)); e(salu("s_mov_b32", SRD_O[2], 128 * 13 * KB)); e(salu("s_mov_b32", SRD_O[3], 0x20000))
    e(scmp("s_cmp_eq_u32", sHALF, 0)); e(branch("s_cbranch_scc1", "L1a_start"))
    k0 = ST.k
    progs = []
    for NT, loader, tag in ((6, True, "b"), (7, False, "a")):
        ST.k = k0
        trace, prog = Role(NT, loader, tag, ST).build()
        trace = P + trace
        for _ in range(5):
            if auto_lgkm(trace) == 0: break
        else: raise RuntimeError("lgkm not stable")
        probs = check_hazards(expand(trace), name + tag)
        for p in probs: print(p)
        assert not probs
        progs.append(prog)
    END = [label("L1_end"), raw("s_endpgm")]
    if not fused:
        return text(expand(P + progs[0] + progs[1] + [label("L1_done")] + END))
    import k2
    return text(expand(P + progs[0] + progs[1] + END)) + k2.build_fused(stamp)

if __name__ == "__main__":
    s = build("k1")
    print(len(s.splitlines()), "lines")
```

```python
import re

def R(pre, lo, n=1):
    return [f"{pre}{lo+i}" for i in range(n)]
def rng(pre, lo, n):
    return f"{pre}{lo}" if n == 1 else f"{pre}[{lo}:{lo+n-1}]"

class Reg:
    def __init__(self, f, b, n=1): self.f, self.b, self.n = f, b, n
    def __str__(self): return rng(self.f, self.b, self.n)
    def regs(self): return R(self.f, self.b, self.n)
    def __getitem__(self, i):
        if isinstance(i, slice):
            st = i.start or 0; en = i.stop if i.stop is not None else self.n
            assert 0 <= st < en <= self.n, (st, en, self.n)
            return Reg(self.f, self.b + st, en - st)
        assert 0 <= i < self.n, (i, self.n)
        return Reg(self.f, self.b + i, 1)
def V(b, n=1): return Reg('v', b, n)
def A(b, n=1): return Reg('a', b, n)
def S(b, n=1): return Reg('s', b, n)

def regs_of(x):
    if isinstance(x, Reg): return x.regs()
    if isinstance(x, str):
        if x in ("vcc", "exec", "m0", "scc"): return [x]
        m = re.fullmatch(r"-?\|?([vas])(\d+)\|?", x)
        if m: return [m.group(1) + m.group(2)]
        m = re.fullmatch(r"([vas])\[(\d+):(\d+)\]", x)
        if m: return R(m.group(1), int(m.group(2)), int(m.group(3)) - int(m.group(2)) + 1)
    return []

class I:
    __slots__ = ("text", "kind", "rd", "wr", "post_lgkm", "pre_lgkm", "mf", "nstates", "comment")
    def __init__(self, text, kind, rd=(), wr=(), mf=None, nstates=1):
        self.text, self.kind = text, kind
        self.rd = set(); self.wr = set()
        for x in rd: self.rd.update(regs_of(x))
        for x in wr: self.wr.update(regs_of(x))
        self.post_lgkm = None; self.pre_lgkm = None
        self.mf = mf
        self.nstates = nstates
    def __repr__(self): return self.text

def mfma16(D, Aop, Bop, C):
    c = C if isinstance(C, Reg) else None
    return I(f"v_mfma_f32_16x16x32_bf16 {D}, {Aop}, {Bop}, {C}", "mfma", rd=[Aop, Bop] + ([c] if c else []), wr=[D],
             mf=dict(A=set(Aop.regs()), B=set(Bop.regs()), C=set(c.regs()) if c else set(), D=set(D.regs()), passes=4))
def valu(op, dst, *src, extra="", rmw=False, wr_extra=(), rd_extra=()):
    t = f"{op} {dst}, " + ", ".join(str(s) for s in src) + (" " + extra if extra else "")
    kind = "trans" if op.split("_e")[0] in ("v_exp_f32", "v_rcp_f32", "v_log_f32", "v_rsq_f32") else "valu"
    rd = list(src) + ([dst] if rmw else []) + list(rd_extra)
    return I(t, kind, rd=rd, wr=[dst] + list(wr_extra))
def permswap(op, a, b):
    return I(f"{op} {a}, {b}", "perm", rd=[a, b], wr=[a, b])
def salu(op, dst, *src):
    t = f"{op} {dst}, " + ", ".join(str(s) for s in src)
    return I(t, "salu", rd=list(src), wr=[dst, "scc"])
def scmp(op, a, b):
    return I(f"{op} {a}, {b}", "salu", rd=[a, b], wr=["scc"])
def ds_r(op, dst, addr, off):
    assert 0 <= off < 65536, off
    return I(f"{op} {dst}, {addr} offset:{off}", "lds_r", rd=[addr], wr=[dst])
def ds_w(op, addr, src, off):
    assert 0 <= off < 65536, off
    return I(f"{op} {addr}, {src} offset:{off}", "lds_w", rd=[addr, src])
def dma(voff, srd, soff, off=0, flags=""):
    assert 0 <= off < 4096
    return I(f"buffer_load_dwordx4 {voff}, {srd}, {soff} offen offset:{off}{(' ' + flags) if flags else ''} lds", "dma", rd=[voff, srd, soff, "m0"])
def bload(dst, voff, srd, soff, off=0, flags=""):
    assert 0 <= off < 4096
    op = {1: "dword", 2: "dwordx2", 4: "dwordx4"}[dst.n]
    return I(f"buffer_load_{op} {dst}, {voff}, {srd}, {soff} offen offset:{off}{(' ' + flags) if flags else ''}", "vmem_l", rd=[voff, srd, soff], wr=[dst])
def bstore(src, voff, srd, soff, off=0, flags=""):
    assert 0 <= off < 4096
    op = {1: "dword", 2: "dwordx2", 4: "dwordx4"}[src.n]
    return I(f"buffer_store_{op} {src}, {voff}, {srd}, {soff} offen offset:{off}{(' ' + flags) if flags else ''}", "vmem_s", rd=[src, voff, srd, soff])
def wait(vm=None, lgkm=None):
    t = "s_waitcnt" + (f" vmcnt({vm})" if vm is not None else "") + (f" lgkmcnt({lgkm})" if lgkm is not None else "")
    i = I(t, "wait"); i.mf = dict(vm=vm, lgkm=lgkm); return i
def nop(n):
    assert 1 <= n <= 16
    return I(f"s_nop {n-1}", "nop", nstates=n)
def barrier(): return I("s_barrier", "barrier")
def label(n): return I(f"{n}:", "label", nstates=0)
def branch(op, tgt): return I(f"{op} {tgt}", "branch", rd=["scc", "vcc"])
def raw(t, kind="other", rd=(), wr=()): return I(t, kind, rd=rd, wr=wr)
def comment(t): return I("; " + t, "label", nstates=0)

def auto_lgkm(trace):
    changes = 0
    pend = []
    last_mfma = None
    for idx, ins in enumerate(trace):
        def apply(n):
            nonlocal pend
            if n is not None and len(pend) > n: pend = pend[len(pend) - n:] if n else []
        apply(ins.pre_lgkm)
        if ins.kind == "wait": apply(ins.mf["lgkm"])
        touched = ins.rd | ins.wr
        need = -1
        for k, (ti, rg) in enumerate(pend):
            if rg & touched: need = k
        if need >= 0:
            ti = pend[need][0]
            if last_mfma is not None and last_mfma > ti and all(trace[q].kind not in ("label", "branch") or trace[q].text.startswith(";") for q in range(last_mfma, idx)):
                n = sum(1 for (t2, _) in pend[need + 1:] if t2 < last_mfma)
                q = trace[last_mfma]
                if q.post_lgkm is None or q.post_lgkm > n: q.post_lgkm = n; changes += 1
            else:
                n = len(pend) - need - 1
                if ins.pre_lgkm is None or ins.pre_lgkm > n: ins.pre_lgkm = n; changes += 1
            pend = pend[need + 1:]
        if ins.kind in ("lds_r", "lds_w") and len(pend) >= 15:
            if last_mfma is not None and last_mfma > pend[-1][0] and all(trace[q].kind not in ("label", "branch") or trace[q].text.startswith(";") for q in range(last_mfma, idx)):
                q = trace[last_mfma]
                if q.post_lgkm is None or q.post_lgkm > 8: q.post_lgkm = 8; changes += 1
            else:
                if ins.pre_lgkm is None or ins.pre_lgkm > 8: ins.pre_lgkm = 8; changes += 1
            pend = pend[-8:]
        if ins.kind == "lds_r": pend.append((idx, set(ins.wr)))
        elif ins.kind == "lds_w": pend.append((idx, set()))
        if ins.kind == "mfma": last_mfma = idx
        apply(ins.post_lgkm)
    return changes

def expand(seq):
    out = []
    for ins in seq:
        if ins.pre_lgkm is not None: out.append(wait(lgkm=ins.pre_lgkm))
        out.append(ins)
        if ins.post_lgkm is not None: out.append(wait(lgkm=ins.post_lgkm))
    return out

VALUK = ("valu", "trans", "perm")
def check_hazards(trace, name=""):
    probs = []
    pos = []; p = 0
    for ins in trace:
        pos.append(p); p += ins.nstates
    n = len(trace)
    def dist(i, j):
        return pos[j] - pos[i] - trace[i].nstates
    for i, a in enumerate(trace):
        if a.kind in ("label", "nop", "wait", "barrier", "branch"): continue
        for j in range(i + 1, min(n, i + 40)):
            b = trace[j]
            d = dist(i, j)
            if d >= 20: break
            need = 0; why = ""
            if a.kind == "mfma":
                D = a.mf["D"]
                if b.kind == "mfma":
                    if D & (b.mf["A"] | b.mf["B"]): need, why = 8, "mfma D->A/B"
                    elif D & b.mf["C"] and b.mf["C"] != D: need, why = 6, "mfma D->C partial"
                elif b.kind in VALUK + ("lds_r", "lds_w", "vmem_l", "vmem_s", "dma"):
                    if D & (b.rd | b.wr): need, why = 8, "mfma D->valu/mem"
                if b.kind in VALUK and a.mf["C"] & b.wr: need, why = max(need, 3), why + " srcC WAR"
            if a.kind in VALUK:
                vw = {r for r in a.wr if r[0] in "va" and r != "vcc"}
                sw = {r for r in a.wr if r[0] == "s" or r == "vcc"}
                if b.kind == "mfma" and vw & b.rd: need, why = max(need, 2), "valu->mfma"
                if b.kind == "perm" and vw & b.rd: need, why = max(need, 2), "valu->perm"
                if a.kind == "trans" and b.kind in ("valu", "perm") and vw & b.rd: need, why = max(need, 1), "trans->valu"
                if ("readfirstlane" in b.text or "readlane" in b.text) and vw & b.rd: need, why = max(need, 1), "valu->readlane"
                if sw & b.rd and b.kind in ("vmem_l", "vmem_s", "dma"): need, why = max(need, 5), "valu sgpr->vmem"
                if sw & b.rd and b.kind in VALUK: need, why = max(need, 2), "valu sgpr->valu"
            if a.kind == "salu" and "m0" in a.wr and b.kind == "dma": need, why = max(need, 1), "m0->dma"
            if a.kind == "vmem_s" and "x4" in a.text and b.kind in VALUK and (a.rd & b.wr): need, why = max(need, 2), "store data WAR"
            if need > d:
                probs.append(f"{name}: hazard {why}: need {need} have {d}:\n    {a.text}\n    {b.text}")
    return probs

def text(seq):
    out = []
    for ins in seq:
        out.append(ins.text if ins.kind == "label" and not ins.text.startswith(";") else "  " + ins.text)
    return "\n".join(out) + "\n"

class Stamps:
    def __init__(self, on, base=60, n=16): self.on, self.base, self.n, self.k = on, base, n, 0
    def __call__(self):
        if not self.on: return []
        k = self.k; self.k += 1; assert k < self.n
        import os
        return [raw(f"{os.environ.get('STOP', 's_memrealtime')} s[{self.base+2*k}:{self.base+2*k+1}]", "smem")]
    def dump(self, wsreg, wave_sgpr, off):
        if not self.on: return []
        o = [raw("s_waitcnt vmcnt(0) lgkmcnt(0)", "other")] + self() + [raw("s_waitcnt lgkmcnt(0)", "other")]
        o.append(raw(f"s_lshl_b32 s58, s2, 2", "salu")); o.append(raw(f"s_add_u32 s58, s58, {wave_sgpr}", "salu"))
        o.append(raw(f"s_mul_i32 s58, s58, {self.n*8}", "salu")); o.append(raw(f"s_add_u32 s58, s58, {off}", "salu"))
        o.append(raw("v_mov_b32 v7, s58", "other")); o.append(raw("s_mov_b64 exec, 1", "other"))
        for i in range(self.n):
            o += [raw(f"v_mov_b32 v4, s{self.base+2*i}", "other"), raw(f"v_mov_b32 v5, s{self.base+2*i+1}", "other"),
                  raw(f"global_store_dwordx2 v7, v[4:5], {wsreg} offset:{8*i}", "other"), raw("s_nop 1", "other")]
        o.append(raw("s_waitcnt vmcnt(0)", "other"))
        return o
```

```python
from fw import *
import struct, os
import k2
OPT = dict(kv.split('=') for kv in os.environ.get('K1OPT', '').split(',') if kv)
def f32(x): return "0x%08x" % struct.unpack("<I", struct.pack("<f", x))[0]
KB = 1024
QSCALE = 1.4426950408889634 * (128 ** -0.5)

sW, sHH, sHALF, sB, sHEAD = S(3), S(4), S(5), S(6), S(7)
SRD_X, SRD_W, SRD_K, SRD_V, SRD_O = S(8, 4), S(12, 4), S(16, 4), S(20, 4), S(24, 4)
sRot = S(39)
sXld, sWld, sSPld = S(40), S(41), S(42)
sXoff, sWoff, sKoff = S(43), S(44), S(45)
sT = [S(46), S(47), S(48), S(49)]
sCnt, sFB = S(50), S(51)
sScale = S(52, 2)
sOoff, sKlin = S(54), S(55)
sTmp2 = S(56, 2)
def kadv(): return [salu('s_add_u32', sKlin, sKlin, 8192), salu('s_xor_b32', sKoff, sKlin, sRot)]

vLane, vT0, vT1, vT2 = V(1), V(2), V(3), V(29)
vXd, vWd, vKd, vKd2 = V(4), V(5), V(6), V(31)
vXr = [V(7), V(8)]
vWr = [V(9 + i) for i in range(4)]
vKr = [V(13 + i) for i in range(4)]
vVr = [V(17 + i) for i in range(7)] + [V(28)]
vKs = [V(24 + i) for i in range(4)]
vOst = V(30)
ACC0 = 32
def acc(t, f): return V(ACC0 + t * 32 + f * 4, 4)
def Qf(t, ds): return V(ACC0 + t * 32 + ds * 4, 4)
def fr(t, o, n): return V(ACC0 + t * 32 + 16 + o, n)
def Cm(t): return fr(t, 0, 4)
def Lr(t): return fr(t, 4, 1)
def Tm(t): return fr(t, 5, 1)
def Tm2(t): return fr(t, 6, 2)
SB = [fr(0, 8, 8), fr(1, 8, 8)]
PB = [fr(2, 8, 4), fr(2, 12, 4)]
def O6(dt): return fr(3 + (dt >> 1), 8 + 4 * (dt & 1), 4)
def Oacc(t, dt): return A(t * 32 + dt * 4, 4) if t < 6 else O6(dt)
QB = int(OPT.get('qb', '0'))
vXr6 = [V(224), V(225)]
def Kf(f): return A(192 + 4 * f, 4)
def Vf(dt): return A(224 + 4 * dt, 4)
def Wset(p, f): return A(112 + 32 * p + 4 * f, 4)
def Xset(p, t): return A(28 * p + 4 * t, 4)

def inter(mf, gaps):
    out = []
    assert all(0 <= k < len(mf) for k in gaps), (sorted(gaps), len(mf))
    order = lambda i: 0 if i.kind in ("salu", "wait", "barrier", "branch", "label", "smem", "nop") else (1 if i.kind in ("lds_r", "lds_w", "dma", "vmem_l", "vmem_s") else 2)
    for k, m in enumerate(mf):
        out.append(m)
        out.extend(sorted(gaps.get(k, []), key=order))
    return out
flat = lambda gs: [o for g in gs for o in g]

def wchunk(s): return (1 + 4 * (s & 1) + 2 * ((s >> 1) & 1)) * 8 * KB

def dma_w(s):
    g = []
    for p in range(8):
        ops = []
        if p % 4 == 0: ops.append(salu("s_add_u32", "m0", sWld, wchunk(s) + (p >> 2) * 4096))
        ops.append(salu("s_add_u32", sT[p & 1], sWoff, p * 32768 - (p & 3) * KB))
        ops.append(dma(vWd, SRD_W, sT[p & 1], (p & 3) * KB))
        g.append(ops)
    g[-1] = g[-1] + [salu("s_add_u32", sWoff, sWoff, 262144)]
    return g
def dma_x(par, lo, hi):
    g = []
    for T in range(lo, hi):
        fh, t = (0, T) if T < 7 else (1, T - 7)
        ops = [salu("s_add_u32", "m0", sXld, fh * 64 * KB + par * 16 * KB + t * KB), salu("s_add_u32", sT[T & 1], sXoff, T * 32768),
               dma(vXd, SRD_X, sT[T & 1], 0)]
        g.append(ops)
    if hi == 13: g[-1] = g[-1] + [salu("s_add_u32", sXoff, sXoff, 128)]
    return g
KVF = OPT.get("kvflag", "nt").replace("none", "")
def dma_kv(which, base, off):
    srd = SRD_K if which == "K" else SRD_V
    g = []
    for p in range(8):
        pre = [salu("s_add_u32", "m0", base, off + (p >> 2) * 4096)] if p % 4 == 0 else []
        g.append((pre, dma(vKd if p < 4 else vKd2, srd, sKoff, (p & 3) * KB, KVF)))
    return g
DEPTH = int(OPT.get("depth", "7"))
if DEPTH > 60: DEPTH = None
LEAD = int(OPT.get("lead", "3"))
def kv_groups(g, depth=None): return [pre + ([wait(vm=depth)] if depth is not None else []) + ([nop(1)] if pre and depth is None else []) + [d] for pre, d in g]

def reads_w(s):
    r = []
    for f in range(8):
        ds, T = f >> 1, f & 1
        for a in range(2):
            r.append(ds_r("ds_read_b64_tr_b16", Wset(s & 1, f)[2 * a:2 * a + 2], vWr[ds], wchunk(s) + a * KB + 8 * T))
    return r
def read_k(f, addr, off): return ds_r("ds_read_b128", Kf(f), addr[f & 3], off + (f >> 2) * 2048)
def read_v(dt, kt, addr, off): return ds_r("ds_read_b64_tr_b16", Vf(dt)[2 * kt:2 * kt + 2], addr[dt], off + kt * 2048)

def qk_block(t, sb, cinit=True):
    mf = []
    for kt in range(2):
        D = SB[sb][4 * kt:4 * kt + 4]
        for ds in range(4):
            mf.append(mfma16(D, Kf(4 * kt + ds), Qf(t, ds), (Cm(t) if cinit else 0) if ds == 0 else D))
    return mf
def pv_block(t, sb, first=False):
    return [mfma16(Oacc(t, dt), Vf(dt), PB[sb], 0 if first else Oacc(t, dt)) for dt in range(8)]
def E(sb, i): return valu("v_exp_f32", SB[sb][i], SB[sb][i])
def AD(t, sb, i): return valu("v_add_f32", Lr(t), Lr(t), SB[sb][i])
def CV(sb, k): return valu("v_cvt_pk_bf16_f32", PB[sb][k], SB[sb][2 * k], SB[sb][2 * k + 1])
def sm_half(t, sb, h):
    o = 4 * h
    return {0: [AD(t, sb, o)], 1: [E(sb, o + 1)], 2: [AD(t, sb, o + 1), CV(sb, 2 * h)], 3: [E(sb, o + 2)],
            4: [AD(t, sb, o + 2)], 5: [E(sb, o + 3)], 6: [AD(t, sb, o + 3), CV(sb, 2 * h + 1)]}

def xgroup_reduce(op, regs, tmps):
    o = []
    for sw in ("v_permlane16_swap_b32", "v_permlane32_swap_b32"):
        for r, t in zip(regs, tmps): o.append(valu("v_mov_b32", t, r))
        o.append(nop(2))
        for r, t in zip(regs, tmps): o.append(permswap(sw, r, t))
        o.append(nop(1))
        for r, t in zip(regs, tmps): o.append(valu(op, r, r, t))
    return o

class Role:
    def __init__(self, NT, loader, tag, ST):
        self.NT, self.loader, self.tag, self.ST = NT, loader, tag, ST
    def L(self, n): return f"L1{self.tag}_{n}"
    def tf(self):
        l = [(t, f) for t in range(6) for f in range(8)]
        return l + [(6, f) for f in (range(8 - 2 * QB, 8) if self.loader else range(8 - 2 * QB))]
    def reads_x(self, a):
        r = [ds_r("ds_read_b128", Xset((a & 1) * 2 + sp, t), vXr[sp], (a & 1) * 16 * KB + t * KB) for sp in range(2) for t in range(self.NT)]
        if self.loader and QB: r += [ds_r("ds_read_b128", Xset((a & 1) * 2 + sp, 6), vXr6[sp], (a & 1) * 16 * KB + 6 * KB) for sp in range(2)]
        return r
    def kstep(self, s, vm, reads, dmas, extra=None, vma=None):
        NT = self.NT
        a = s >> 1
        mf = [mfma16(acc(t, f), Wset(s & 1, f), Xset((a & 1) * 2 + (s & 1), t), acc(t, f)) for t, f in self.tf()]
        gaps = {}
        n = len(mf)
        span = n - 10
        for i, r in enumerate(reads): gaps.setdefault(i * span // max(len(reads), 1), []).append(r)
        if OPT.get("noqdma") and not any("s[16:19]" in str(o) for g in dmas for o in g): dmas = [[o for o in g if o.kind != "dma"] for g in dmas]
        if OPT.get("noqread"): gaps = {}
        if self.loader:
            pos = [1 + i * (n - 3) // max(len(dmas), 1) for i in range(len(dmas))]
            assert len(set(pos)) == len(pos)
            for k, g in zip(pos, dmas): gaps.setdefault(k, []).extend(g)
        for k, ops in (extra or {}).items(): gaps.setdefault(k, []).extend(ops)
        head = [wait(vm=vm if self.loader else vma, lgkm=0)] + ([] if OPT.get("noqbar") else [barrier()])
        return head + inter(mf, gaps)
    def period(self, j, first=False, exit_label=None, wot=False):
        NT = self.NT
        out = []
        slot_cur = (j - 1) & 3
        slot_nxt = j & 3
        H = 2 * NT
        dm = []
        dmpos = {}
        advpos = None
        if LEAD == 4:
            if self.loader and not first:
                dm = dma_kv("K", sWld, slot_cur * 8 * KB) + dma_kv("V", sWld, 32 * KB + slot_cur * 8 * KB)
                slots = [(hs, g) for hs in range(2, H) for g in (3, 7)][:-1]
                advpos = (H - 1, 5)
        elif self.loader:
            dm = dma_kv("V", sWld, 32 * KB + ((j + 2) & 3) * 8 * KB) + dma_kv("K", sWld, slot_cur * 8 * KB)
            slots = [(hs, g) for hs in range(H) for g in (3, 7)]
        for i, x in enumerate(dm):
            hs, g = slots[i * len(slots) // len(dm)]
            dmpos.setdefault(hs, []).append((g, x))
            if LEAD != 4 and i == 8:
                assert g == 3 and slots[7 * len(slots) // len(dm)] <= (hs - 1, 3) and hs >= 2
                advpos = (hs - 1, 5)
        for hs in range(H):
            t = hs >> 1
            sb = (j * NT + t) & 1
            tn = (t + 1) % NT
            if hs % 2 == 0:
                mf = qk_block(tn, sb ^ 1); gaps = sm_half(t, sb, 1); gaps[7] = [E(sb ^ 1, 0)]
            else:
                mf = pv_block(t, sb, first); gaps = sm_half(tn, sb ^ 1, 0); gaps[7] = [E(sb ^ 1, 4)]
            def add(g, ops): gaps.setdefault(g, []).extend(ops)
            if hs == 0 and not first:
                for g in range(8): add(g, [read_v(4 + (g >> 1), g & 1, vVr, slot_cur * 8 * KB)])
            if hs == H - 1:
                for g in range(8): add(g, [read_v(g >> 1, g & 1, vVr, slot_nxt * 8 * KB)])
            if hs in (H - 4, H - 3):
                for q in range(4): add(2 * q, [read_k(4 * (hs - (H - 4)) + q, vKr, slot_nxt * 8 * KB)])
            if hs == 1:
                add(7, ([wait(vm=(48 if first else 32) if LEAD == 4 else 16)] if self.loader else []) + [barrier()])
            if dm:
                for gi, (pre, d) in dmpos.get(hs, []):
                    add(gi - 2, pre)
                    if DEPTH is not None: add(gi - 1, [wait(vm=DEPTH)])
                    add(gi, [d])
            if wot and hs in wot:
                it, srd, voff, off = wot[hs]
                pre = [salu("s_add_u32", sT[1], off[0], off[1])] if isinstance(off, tuple) else [salu("s_mov_b32", sT[1], off)]
                add(0, pre); add(4, [scmp("s_cmp_eq_u32", sCnt, it), salu("s_cselect_b32", sT[0], sT[1], 0x1000000), bload(vT2, voff, srd, sT[0])])
            if advpos and hs == advpos[0]: add(advpos[1], kadv()[:1]); add(advpos[1] + 1, kadv()[1:])
            if exit_label and hs == H - 3:
                add(7, [scmp("s_cmp_eq_u32", sCnt, 7)])
            out += inter(mf, gaps)
            if exit_label and hs == H - 3:
                out.append(branch("s_cbranch_scc1", exit_label))
        return out

    def build(self):
        NT, ST, L = self.NT, self.ST, self.L
        ld = self.loader
        P = [label(L("start"))]
        e = P.append
        if ld:
            P += flat(dma_w(0)) + flat(dma_x(0, 0, 13)) + flat(dma_w(1))
        P += common_addr()
        for t, f in self.tf():
            for k in range(4): e(valu("v_mov_b32", acc(t, f)[k], 0))
        if ld and QB:
            for sp in range(2): e(valu("v_subrev_u32", vXr6[sp], 64 * KB, vXr[sp]))
        NM = len(self.tf())
        if ld:
            e(salu("s_add_u32", sXoff, sXoff, 128)); e(salu("s_add_u32", sWoff, sWoff, 262144))
            P += kadv()
            e(wait(vm=8))
        else:
            e(salu("s_mov_b32", sXoff, 128)); e(salu("s_mov_b32", sWoff, 2 * 262144))
            P += flat(dma_x(1, 0, 13)) + flat(dma_w(2))
        e(barrier())
        P += ST()
        P += reads_w(0) + self.reads_x(0)
        if ld:
            P += flat(dma_w(3)) + [wait(vm=8)]
        else:
            for k in range(4): e(salu("s_mov_b32", SRD_X[k], SRD_K[k] if k < 3 else 0x20000))
            e(salu("s_mov_b32", sXld, sSPld))
            e(valu("v_mov_b32", vXd, vKd))
            e(valu("v_lshlrev_b32", vWd, 7, vLane))
            if OPT.get("codepf", "1") == "1": P += code_touch()
            P += k2.flag_addr(sT[0], sB, sHEAD, sT[1])
            P += [scmp("s_cmp_lg_u32", sW, 0), branch("s_cbranch_scc1", L("norst")), valu("v_mov_b32", vT0, sT[0]), valu("v_mov_b32", vT1, 0), raw("s_mov_b64 exec, 1", "salu"),
                  raw(f"global_store_dword {vT0}, {vT1}, s[98:99] sc1", "vmem_s", rd=[vT0, vT1]), raw("s_mov_b64 exec, -1", "salu"), label(L("norst"))]
        def qloop(name, last, bg):
            QL = [label(L(name))]
            for s in range(4):
                reads = reads_w(s + 1) + (self.reads_x((s + 1) >> 1) if s & 1 else [])
                dmas = (dma_x(s >> 1, 0, 7) if s % 2 == 0 else dma_x(s >> 1, 7, 13)) + dma_w(s)
                extra = bg(s) if not ld else {}
                if s == 3: extra.update({NM - 2: [salu("s_add_u32", sCnt, sCnt, 1)], NM - 1: [scmp("s_cmp_lt_u32", sCnt, last)]})
                QL += self.kstep(s, 29 if s % 2 == 0 else 23, reads, dmas, extra, vma=1 if (s == 1 and name == "qloopA") else None)
            QL.append(branch("s_cbranch_scc1", L(name)))
            return QL
        def bgA(s):
            x = {3: [dma(vXd, SRD_X, sKoff, s * KB, KVF)]}
            if s == 0: x[1] = [salu("s_mov_b32", "m0", sXld)]
            if s == 3:
                x[5] = [salu("s_add_u32", sXld, sXld, 4096), valu("v_xor_b32", vXd, 0x1080, vXd)]
                x[7] = [scmp("s_cmp_eq_u32", sCnt, 1)]
                x[8] = [salu("s_cselect_b32", SRD_X[0], SRD_V[0], SRD_X[0])]
                x[9] = [salu("s_cselect_b32", SRD_X[1], SRD_V[1], SRD_X[1])]
            return x
        def touch(w): return bload(vKd2, vWd, SRD_K if w == "K" else SRD_V, sKoff, 0, OPT.get("pfflag", ""))
        NPF = int(OPT.get("npf", "0"))
        def bgB(s):
            if not NPF: return {}
            if s == 0: return {1: kadv()[:1], 2: kadv()[1:], 3: [touch("K")]}
            if s == 2: return {3: [touch("V")]}
            return {}
        def bgT(s):
            if NPF < 2 or ld: return {}
            if s % 2 == 0: return {1: kadv()[:1], 2: kadv()[1:], 3: [touch("K")]}
            return {3: [touch("V")]}
        if ld:
            QL = qloop("qloop", 7, None)
            QLt = QL + QL
        else:
            LA, LB = qloop("qloopA", 4, bgA), qloop("qloopB", 7, bgB)
            CN = [scmp("s_cmp_lg_u32", sW, 0), branch("s_cbranch_scc1", L("nocnt")),
                  salu("s_lshr_b32", sT[0], sHEAD, 3), salu("s_lshl_b32", sT[1], sB, 2), salu("s_add_u32", sT[0], sT[0], sT[1]), salu("s_lshl_b32", sT[0], sT[0], 2),
                  valu("v_mov_b32", vT0, sT[0]), valu("v_mov_b32", vT1, 1), raw("s_mov_b64 exec, 1", "salu"),
                  raw(f"global_atomic_add {vT0}, {vT1}, s[96:97] sc1", "vmem_s", rd=[vT0, vT1]), raw("s_mov_b64 exec, -1", "salu"), label(L("nocnt"))]
            QL = LA + CN + LB
            QLt = LA + LA + CN + LB + LB
        QT = ST()
        kvg = lambda w, off: kv_groups(dma_kv(w, sWld, off), DEPTH)
        vVs = [V(0), vT0, vT1, vT2] + vKs
        spv = [salu("s_sub_u32", sT[2], sSPld, sWld), salu("s_sub_u32", sT[2], sT[2], 24 * KB)]
        def mrg(a, b):
            for k, v in b.items(): a.setdefault(k, []).extend(v)
            return a
        if LEAD == 4: qd = [kvg("K", 8 * i * KB) + kvg("V", (32 + 8 * i) * KB) + [kadv()] for i in range(4)]; qw = (24, 32)
        else: qd = [kvg("K", 0), kvg("V", 32 * KB) + [kadv()], kvg("K", 8 * KB), kvg("V", 40 * KB) + [kadv()]]; qw = (16, 16)
        QT += self.kstep(0, 29, reads_w(1), qd[0], bgT(0), vma=6 if NPF else 0)
        QT += self.kstep(1, qw[0], reads_w(2) + self.reads_x(1), qd[1], bgT(1))
        QT += self.kstep(2, qw[1], [read_k(f, vKs, 0) for f in range(8)] + reads_w(3), qd[2],
                         mrg(bgT(2), {30: spv, **{32 + dt: [valu("v_add_u32", vVs[dt], sT[2], vVr[dt])] for dt in range(8)}}))
        QT += self.kstep(3, None, [read_v(dt, kt, vVs, 0) for dt in range(8) for kt in range(2)], qd[3], bgT(3))
        tk = kvg("K", 16 * KB) if (ld and LEAD != 4) else []
        T = ST()
        e = T.append
        T += k2.early_setup(sB, sHEAD)
        e(salu("s_mov_b32", k2.sO16, 0x1000000 if ld else sOoff))
        def conv(t, dss=range(4)):
            o = []
            for ds in dss:
                src = V(ACC0 + t * 32 + ds * 8, 8)
                for k in range(4): o.append(valu("v_pk_mul_f32", src[2 * k:2 * k + 2], src[2 * k:2 * k + 2], sScale))
                for k in range(4): o.append(valu("v_cvt_pk_bf16_f32", Qf(t, ds)[k], src[2 * k], src[2 * k + 1]))
            return o
        def prepass(t): return [mfma16(Cm(t), Kf(ds), Qf(t, ds), 0 if ds == 0 else Cm(t)) for ds in range(4)]
        vXf = vT2
        if QB:
            e(valu("v_add_u32", vXf, sSPld, vOst))
            if ld:
                T += conv(6, range(4 - QB, 4))
                for ds in range(4 - QB, 4): e(ds_w("ds_write_b128", vXf, Qf(6, ds), ds * KB))
            else:
                T += conv(6, range(4 - QB))
        for t in range(6 if QB else NT):
            c = conv(t)
            if t:
                pp = prepass(t - 1)
                c = c[:4] + pp + c[4:]
            for _ in range(2 if t < 2 else 1):
                if tk: c = tk.pop(0) + c if _ == 0 else c[:18] + tk.pop(0) + c[18:]
            T += c
            if QB and t == 1:
                T += [wait(lgkm=0), barrier()]
                if not ld:
                    for ds in range(4 - QB, 4): e(ds_r("ds_read_b128", Qf(6, ds), vXf, ds * KB))
            if QB and t == 3 and not ld: T += prepass(6)
        e(nop(2))
        T += prepass(5 if QB else NT - 1)
        for t in range(NT): e(valu("v_mov_b32", Lr(t), 0))
        e(nop(2))
        for t in range(NT): e(valu("v_max3_f32", Cm(t)[0], Cm(t)[0], Cm(t)[1], Cm(t)[2]))
        for t in range(NT): e(valu("v_max_f32", Cm(t)[0], Cm(t)[0], Cm(t)[3]))
        T += xgroup_reduce("v_max_f32", [Cm(t)[0] for t in range(NT)], [Cm(t)[1] for t in range(NT)])
        for k in (3, 2, 1, 0): e(valu("v_sub_f32", Cm(0)[k], 0, Cm(0)[0]))
        e(salu("s_mov_b32", sCnt, 0)); e(nop(1))
        rest = [valu("v_sub_f32", Cm(t)[k], 0, Cm(t)[0]) for t in range(1, NT) for k in (3, 2, 1, 0)]
        T += inter(qk_block(0, 0), {k: rest[3 * k:3 * k + 3] for k in range(8)})
        e(nop(4))
        for i in range(4): e(E(0, i))
        e(E(0, 4))
        for i in range(4): e(AD(0, 0, i))
        e(CV(0, 0)); e(CV(0, 1))
        A0 = ST() + self.period(0, first=True)
        w1 = {} if ld else {2: (7, k2.SRD_W, k2.vTch, (k2.sWarm, 0)), 4: (7, k2.SRD_W, k2.vTch, (k2.sWarm, 65536))}
        AL = [label(L("aloop"))] + self.period(1, wot=w1) + self.period(2)
        ALa = self.period(3, exit_label=L("tail"))
        cut = max(i for i, x in enumerate(ALa) if x.kind == "branch") + 1
        ALb = self.period(4) + [salu("s_add_u32", sCnt, sCnt, 1), branch("s_branch", L("aloop"))]
        TL = [label(L("tail"))] + ST()
        sb = (3 * NT + NT - 1) & 1
        g = sm_half(NT - 1, sb, 1)
        for k in (1, 3, 5): TL += g[k]
        TL.append(nop(1))
        for k in (0, 2, 4, 6): TL += g[k]
        TL.append(nop(2))
        TL += pv_block(NT - 1, sb)
        TL += k2.valid_setup()
        TL += [wait(vm=0), barrier()]
        TL += k2.valid_check(L("val"))
        if OPT.get("jst"): TL += ST()
        EP = [label(L("epi"))]
        e = EP.append
        EP += xgroup_reduce("v_add_f32", [Lr(t) for t in range(NT)], [Tm(t) for t in range(NT)])
        vChk, vChl = vT0, vT1
        e(valu("v_mov_b32", vChk, 0)); e(valu("v_mov_b32", vChl, 0))
        for t in range(0, NT - 1, 2): e(valu("v_maximum3_f32", vChl, Lr(t), Lr(t + 1), vChl))
        if NT % 2: e(valu("v_maximum3_f32", vChl, Lr(NT - 1), Lr(NT - 1), vChl))
        for t in range(NT): e(valu("v_rcp_f32", Tm2(t)[0], Lr(t)))
        e(salu("s_mov_b32", sT[1], f32(2.0 ** 28))); e(valu("v_mul_f32", vChk, sT[1], vChl))
        pf = k2.prefetch_groups()
        cnt = [0]
        def frag(t, ds):
            o = []
            n = cnt[0]; cnt[0] += 1
            st = SB[n & 1]; ob = PB[n & 1]
            if t < 6:
                for k in range(8): o.append(valu("v_accvgpr_read_b32", st[k], A(t * 32 + ds * 8 + k)))
                src = st
            else:
                src = V(O6(2 * ds).b, 8)
            if pf and not OPT.get("latepf"): o += pf.pop(0)
            for k in range(4): o.append(valu("v_maximum3_f32", vChk, f"|{src[2*k]}|", f"|{src[2*k+1]}|", vChk))
            for k in range(4): o.append(valu("v_pk_mul_f32", st[2 * k:2 * k + 2], src[2 * k:2 * k + 2], Tm2(t), extra="op_sel_hi:[1,0]"))
            for k in range(4): o.append(valu("v_cvt_pk_bf16_f32", ob[k], st[2 * k], st[2 * k + 1]))
            if ds < 2:
                o.append(salu("s_add_u32", sT[0], sOoff, (((ds >> 1) * 16 + (ds & 1)) * 13 + t) * KB))
                o.append(bstore(ob, vOst, SRD_O, sT[0], 0, "sc1"))
            else:
                for k in range(4): o.append(valu("v_accvgpr_write_b32", k2.Hold((ds - 2) * 7 + t)[k], ob[k]))
            return o
        def check(tag):
            return [salu("s_mov_b32", sT[0], 0x7f800000), raw(f"v_cmp_ngt_f32 vcc, {sT[0]}, {vChk}", "valu", rd=[sT[0], vChk], wr=["vcc"]),
                    scmp("s_cmp_lg_u32", sFB, 0), branch("s_cbranch_scc1", L(tag)), nop(4), branch("s_cbranch_vccnz", L("fb")), label(L(tag))]
        nvm = lambda seq: sum(1 for x in seq if x.kind in ("dma", "vmem_l", "vmem_s"))
        e(scmp("s_cmp_lg_u32", k2.sStage, 0)); e(branch("s_cbranch_scc1", L("epi2")))
        hold_pf = pf[:]; del pf[:]
        for ds in range(2):
            for t in range(NT): EP += frag(t, ds)
        EP += check("ck1")
        if OPT.get("jst"): EP += ST()
        e(label(L("epi2")))
        fr2 = [(t, ds) for ds in (2, 3) for t in range(NT)]
        SIGK = int(OPT.get("sigk", "6")); PK = int(OPT.get("pollk", "1"))
        g2 = flat([frag(t, ds) for t, ds in fr2[:SIGK]])
        EP += g2
        e(scmp("s_cmp_lg_u32", k2.sStage, 0)); e(branch("s_cbranch_scc1", L("epi3")))
        e(wait(vm=0)); e(barrier())
        if not ld: EP += k2.signal(L("sig1"), 1)
        e(salu("s_mov_b32", k2.sStage, 1))
        e(label(L("epi3")))
        if OPT.get("jst"): EP += ST()
        rest = fr2[SIGK:]
        npf = -(-len(hold_pf) // (len(rest) - PK))
        for i, (t, ds) in enumerate(rest):
            if i == len(rest) - PK: e(k2.poll_load())
            EP += flat(hold_pf[:npf]); del hold_pf[:npf]
            EP += frag(t, ds)
        assert not hold_pf
        EP += check("ck2")
        EP += ST()
        e(wait(vm=0)); e(branch("s_branch", "L1_done"))
        FB = [label(L("fb"))]
        e = FB.append
        e(wait(vm=0, lgkm=0))
        e(salu("s_mov_b32", sFB, 1))
        e(valu("v_xor_b32", vKd2, 0x1080, vKd))
        sBuf = sXld
        e(salu("s_lshl_b32", sBuf, sW, 13)); e(salu("s_add_u32", sBuf, sBuf, 128 * KB))
        e(salu("s_sub_u32", sT[0], sBuf, sWld))
        for ds in range(4): e(valu("v_add_u32", vKr[ds], sT[0], vKr[ds]))
        e(salu("s_sub_u32", sT[0], sT[0], 32 * KB))
        for dt in range(8): e(valu("v_add_u32", vVr[dt], sT[0], vVr[dt]))
        def fb_load(w): return flat(kv_groups(dma_kv(w, sBuf, 0))) + [wait(vm=0)]
        for t in range(NT): e(valu("v_mov_b32", Lr(t), "0xff800000"))
        e(salu("s_mov_b32", sKoff, 0))
        F1 = [label(L("fb1"))] + fb_load("K") + [read_k(f, vKr, 0) for f in range(8)] + [wait(lgkm=0)]
        for t in range(NT):
            F1 += qk_block(t, t & 1, cinit=False) + [nop(8)]
            for k in range(4): F1.append(valu("v_max3_f32", Lr(t), Lr(t), SB[t & 1][2 * k], SB[t & 1][2 * k + 1]))
        F1 += [salu("s_add_u32", sKoff, sKoff, 8192), scmp("s_cmp_lt_u32", sKoff, 262144), branch("s_cbranch_scc1", L("fb1"))]
        F2 = xgroup_reduce("v_max_f32", [Lr(t) for t in range(NT)], [Tm(t) for t in range(NT)])
        for t in range(NT):
            for k in range(4): F2.append(valu("v_sub_f32", Cm(t)[k], 0, Lr(t)))
        for t in range(NT): F2.append(valu("v_mov_b32", Lr(t), 0))
        for r in range(192): F2.append(valu("v_accvgpr_write_b32", A(r), 0))
        if NT > 6:
            for dt in range(8):
                for k in range(4): F2.append(valu("v_mov_b32", O6(dt)[k], 0))
        F2.append(salu("s_mov_b32", sKoff, 0))
        F3 = [label(L("fb2"))] + fb_load("K") + [read_k(f, vKr, 0) for f in range(8)] + [wait(lgkm=0)]
        F3 += fb_load("V") + [read_v(dt, kt, vVr, 0) for dt in range(8) for kt in range(2)] + [wait(lgkm=0)]
        for t in range(NT):
            sb = t & 1
            F3 += qk_block(t, sb) + [nop(8)] + [E(sb, i) for i in range(8)] + [nop(1)] + [AD(t, sb, i) for i in range(8)] + [CV(sb, k) for k in range(4)] + [nop(2)] + pv_block(t, sb)
        F3 += [salu("s_add_u32", sKoff, sKoff, 8192), scmp("s_cmp_lt_u32", sKoff, 262144), branch("s_cbranch_scc1", L("fb2"))]
        F4 = [nop(8), branch("s_branch", L("epi"))]
        body = AL + ALa + ALb
        trace = P + QLt + QT + T + A0 + body + body + AL + ALa[:cut] + TL + EP + FB + F1 + F1 + F2 + F3 + F3 + F4 + EP
        prog = P + QL + QT + T + A0 + body + TL + EP + FB + F1 + F2 + F3 + F4
        return trace, prog

def touch_wo_setup():
    o = []
    e = o.append
    srd = SRD_W
    e(salu("s_mov_b32", srd[0], "s92")); e(salu("s_mov_b32", srd[1], "s93")); e(salu("s_mov_b32", srd[2], 8388608)); e(salu("s_mov_b32", srd[3], 0x20000))
    e(salu("s_lshl_b32", sXoff, "s2", 15)); e(salu("s_lshl_b32", sT[1], sHH, 14)); e(salu("s_add_u32", sXoff, sXoff, sT[1]))
    e(salu("s_add_u32", sWoff, sXoff, 8192))
    return o

def code_touch():
    o = []
    e = o.append
    srd = SRD_W
    e(raw("s_getpc_b64 s[56:57]", "salu", wr=[sTmp2]))
    e(raw("L1_pc:", "label"))
    e(raw(f"s_sub_u32 {srd[0]}, s56, L1_pc-attn_kernel", "salu", rd=[sTmp2], wr=[srd[0], "scc"]))
    e(raw(f"s_subb_u32 {srd[1]}, s57, 0", "salu", rd=[sTmp2], wr=[srd[1], "scc"]))
    e(raw(f"s_mov_b32 {srd[2]}, L_code_end-attn_kernel", "salu", wr=[srd[2]])); e(salu("s_mov_b32", srd[3], 0x20000))
    e(salu("s_lshr_b32", sT[0], "s2", 3)); e(salu("s_lshl_b32", sT[0], sT[0], 1)); e(salu("s_add_u32", sT[0], sT[0], sHH)); e(salu("s_lshl_b32", sT[0], sT[0], 11))
    e(raw("s_mov_b64 exec, 0xffff", "salu"))
    e(bload(vKd2, vWd, srd, sT[0]))
    e(raw("s_mov_b64 exec, -1", "salu"))
    return o

def common_addr():
    P = []
    e = P.append
    vRho = vT2
    e(valu("v_lshrrev_b32", vT0, 4, vLane))
    e(valu("v_and_b32", vRho, 15, vLane))
    e(valu("v_and_b32", vT1, 6, vRho)); e(valu("v_xor_b32", vT1, vT1, vT0)); e(valu("v_lshlrev_b32", vXr[0], 4, vT1))
    e(valu("v_and_b32", vT1, 7, vRho)); e(valu("v_lshl_add_u32", vXr[0], vT1, 7, vXr[0]))
    e(valu("v_lshrrev_b32", vT1, 3, vRho)); e(valu("v_lshl_add_u32", vXr[0], vT1, 15, vXr[0]))
    e(salu("s_lshl_b32", sT[0], sHALF, 16)); e(valu("v_add_u32", vXr[0], sT[0], vXr[0]))
    e(valu("v_xor_b32", vXr[1], 64, vXr[0]))
    e(valu("v_lshlrev_b32", vWr[0], 4, vRho)); e(valu("v_lshrrev_b32", vT1, 2, vRho)); e(valu("v_lshl_add_u32", vWr[0], vT1, 8, vWr[0]))
    e(valu("v_lshl_add_u32", vWr[0], vT0, 11, vWr[0]))
    e(valu("v_add_u32", vWr[0], sWld, vWr[0]))
    for ds in range(1, 4): e(valu("v_xor_b32", vWr[ds], ds * 64, vWr[0]))
    def kappa(dst, rho, tmp):
        e(valu("v_and_b32", dst, 3, rho)); e(valu("v_lshrrev_b32", tmp, 3, rho)); e(valu("v_lshl_add_u32", dst, tmp, 2, dst))
        e(valu("v_and_b32", tmp, 4, rho)); e(valu("v_lshl_add_u32", dst, tmp, 2, dst))
    kappa(vKr[0], vRho, vT1)
    e(valu("v_lshlrev_b32", vKr[0], 8, vKr[0]))
    e(valu("v_and_b32", vT1, 7, vRho)); e(valu("v_lshlrev_b32", vT1, 1, vT1)); e(valu("v_xor_b32", vT1, vT1, vT0))
    e(valu("v_lshl_add_u32", vKr[0], vT1, 4, vKr[0])); e(valu("v_add_u32", vKr[0], sWld, vKr[0]))
    for ds in range(1, 4): e(valu("v_xor_b32", vKr[ds], ds * 64, vKr[0]))
    e(salu("s_sub_u32", sT[2], sSPld, sWld))
    for ds in range(4): e(valu("v_add_u32", vKs[ds], sT[2], vKr[ds]))
    e(valu("v_lshrrev_b32", vRho, 2, vLane))
    kappa(vVr[0], vRho, vT1)
    e(valu("v_lshlrev_b32", vVr[0], 8, vVr[0]))
    e(valu("v_and_b32", vT1, 7, vRho)); e(valu("v_lshl_add_u32", vVr[0], vT1, 5, vVr[0]))
    e(valu("v_and_b32", vT1, 3, vLane)); e(valu("v_lshl_add_u32", vVr[0], vT1, 3, vVr[0]))
    e(salu("s_add_u32", sT[1], sWld, 32 * KB)); e(valu("v_add_u32", vVr[0], sT[1], vVr[0]))
    for dt in range(1, 8): e(valu("v_xor_b32", vVr[dt], dt * 32, vVr[0]))
    e(valu("v_lshlrev_b32", vOst, 4, vLane))
    e(salu("s_lshr_b32", sOoff, sHEAD, 3)); e(salu("s_lshl_b32", sOoff, sOoff, 4)); e(salu("s_and_b32", sT[0], sHEAD, 7)); e(salu("s_add_u32", sOoff, sOoff, sT[0]))
    e(salu("s_mul_i32", sOoff, sOoff, 26 * KB)); e(salu("s_mul_i32", sT[0], sHALF, 7 * KB)); e(salu("s_add_u32", sOoff, sOoff, sT[0]))
    e(salu("s_mov_b32", sScale[0], f32(QSCALE))); e(salu("s_mov_b32", sScale[1], f32(QSCALE)))
    e(salu("s_mov_b32", sFB, 0)); e(salu("s_mov_b32", sCnt, 0))
    return P

def build(name, stamp=False, fused=False):
    ST = Stamps(stamp)
    P = []
    e = P.append
    e(scmp("s_cmp_ge_u32", "s2", 256)); e(branch("s_cbranch_scc1", "L1_end"))
    P += ST()
    e(raw("s_load_dwordx8 s[28:35], s[0:1], 0", "smem"))
    e(raw("s_load_dwordx8 s[92:99], s[0:1], 32", "smem"))
    e(valu("v_lshrrev_b32", vT0, 6, "v0")); e(valu("v_and_b32", vLane, 63, "v0"))
    e(raw(f"v_readfirstlane_b32 {sW}, {vT0}", "valu", rd=[vT0], wr=[sW]))
    e(salu("s_and_b32", sT[0], "s2", 7)); e(salu("s_lshr_b32", sT[1], "s2", 3))
    e(salu("s_and_b32", sB, sT[0], 1)); e(salu("s_lshl_b32", sB, sB, 3)); e(salu("s_and_b32", sT[2], sT[1], 7)); e(salu("s_add_u32", sB, sB, sT[2]))
    e(salu("s_lshr_b32", sHEAD, sT[0], 1)); e(salu("s_lshl_b32", sHEAD, sHEAD, 2)); e(salu("s_lshr_b32", sT[2], sT[1], 3)); e(salu("s_add_u32", sHEAD, sHEAD, sT[2]))
    e(salu("s_lshr_b32", sHH, sW, 1)); e(salu("s_and_b32", sHALF, sW, 1))
    e(salu("s_lshl_b32", sHEAD, sHEAD, 1)); e(salu("s_add_u32", sHEAD, sHEAD, sHH))
    e(salu("s_lshl_b32", sXld, sHH, 15))
    e(salu("s_lshl_b32", sWld, sHH, 16))
    e(salu("s_lshl_b32", sSPld, sHH, 14)); e(salu("s_add_u32", sSPld, sSPld, 128 * KB))
    e(valu("v_lshrrev_b32", vT0, 3, vLane)); e(valu("v_and_b32", vT1, 6, vT0)); e(valu("v_and_b32", vXd, 7, vLane))
    e(valu("v_xor_b32", vXd, vXd, vT1)); e(valu("v_lshlrev_b32", vXd, 4, vXd)); e(valu("v_lshl_add_u32", vXd, vT0, 11, vXd))
    e(salu("s_lshl_b32", sT[1], sHH, 14))
    e(valu("v_add_u32", vXd, sT[1], vXd))
    e(valu("v_lshrrev_b32", vT0, 4, vLane)); e(valu("v_lshlrev_b32", vT1, 2, vT0)); e(valu("v_and_b32", vWd, 15, vLane))
    e(valu("v_xor_b32", vWd, vWd, vT1)); e(valu("v_lshlrev_b32", vWd, 4, vWd)); e(valu("v_lshl_add_u32", vWd, vT0, 13, vWd))
    e(valu("v_lshlrev_b32", vT1, 1, vT0)); e(valu("v_and_b32", vKd, 15, vLane)); e(valu("v_xor_b32", vKd, vKd, vT1))
    e(valu("v_lshlrev_b32", vKd, 4, vKd)); e(valu("v_lshl_add_u32", vKd, vT0, 8, vKd))
    e(valu("v_xor_b32", vKd2, 0x1080, vKd))
    e(salu("s_mov_b32", sXoff, 0)); e(salu("s_mov_b32", sWoff, 0)); e(salu("s_mov_b32", sKlin, 0))
    e(salu("s_lshr_b32", sRot, "s2", 3)); e(salu("s_lshl_b32", sT[0], "s2", 2)); e(salu("s_add_u32", sRot, sRot, sT[0]))
    e(salu("s_lshl_b32", sT[0], sHH, 4)); e(salu("s_add_u32", sRot, sRot, sT[0])); e(salu("s_and_b32", sRot, sRot, 31)); e(salu("s_lshl_b32", sRot, sRot, 13))
    e(salu("s_mov_b32", sKoff, sRot))
    e(raw("s_waitcnt lgkmcnt(0)", "other"))
    if OPT.get("pstamp"): P += ST()
    e(salu("s_mul_i32", sT[0], sB, 425984))
    e(salu("s_add_u32", SRD_X[0], "s28", sT[0])); e(salu("s_addc_u32", SRD_X[1], "s29", 0)); e(salu("s_mov_b32", SRD_X[2], 425984)); e(salu("s_mov_b32", SRD_X[3], 0x20000))
    e(salu("s_lshl_b32", sT[0], sHEAD, 8))
    e(salu("s_add_u32", SRD_W[0], "s34", sT[0])); e(salu("s_addc_u32", SRD_W[1], "s35", 0)); e(salu("s_sub_u32", SRD_W[2], 8388608, sT[0])); e(salu("s_mov_b32", SRD_W[3], 0x20000))
    e(salu("s_lshl_b32", sT[0], sB, 5)); e(salu("s_add_u32", sT[0], sT[0], sHEAD)); e(salu("s_lshl_b32", sT[0], sT[0], 18))
    e(salu("s_add_u32", SRD_K[0], "s30", sT[0])); e(salu("s_addc_u32", SRD_K[1], "s31", 0)); e(salu("s_mov_b32", SRD_K[2], 262144)); e(salu("s_mov_b32", SRD_K[3], 0x20000))
    e(salu("s_add_u32", SRD_V[0], "s32", sT[0])); e(salu("s_addc_u32", SRD_V[1], "s33", 0)); e(salu("s_mov_b32", SRD_V[2], 262144)); e(salu("s_mov_b32", SRD_V[3], 0x20000))
    e(salu("s_lshl_b32", sT[0], sB, 21))
    e(salu("s_add_u32", SRD_O[0], "s98", sT[0])); e(salu("s_addc_u32", SRD_O[1], "s99", 0)); e(salu("s_mov_b32", SRD_O[2], k2.OSTRIDE)); e(salu("s_mov_b32", SRD_O[3], 0x20000))
    e(scmp("s_cmp_eq_u32", sHALF, 0)); e(branch("s_cbranch_scc1", "L1a_start"))
    k0 = ST.k
    progs = []
    for NT, loader, tag in ((6, True, "b"), (7, False, "a")):
        ST.k = k0
        trace, prog = Role(NT, loader, tag, ST).build()
        trace = P + trace
        for _ in range(5):
            if auto_lgkm(trace) == 0: break
        else: raise RuntimeError("lgkm not stable")
        probs = check_hazards(expand(trace), name + tag)
        for p in probs: print(p)
        assert not probs
        progs.append(prog)
    END = [label("L1_end"), raw("s_endpgm")]
    return text(expand(P + progs[0] + progs[1] + END)) + k2.build_fused(ST) + "L_code_end:\n"

if __name__ == "__main__":
    s = build("k1")
    print(len(s.splitlines()), "lines")
```

```python
from fw import *
import os
KB = 1024
flat = lambda gs: [o for g in gs for o in g]
OPT = dict(kv.split('=') for kv in os.environ.get('K2OPT', '').split(',') if kv)
sW = S(3)
SRD_O, SRD_W, SRD_C = S(8, 4), S(12, 4), S(16, 4)
sLd, sOoff, sWbase, sCnt, sB, sHALF, sNT, sWs, sWoff, sStage, sTw = [S(28 + i) for i in range(11)]
sT = [S(46), S(47), S(48), S(49)]
pWO, pOUT, pDBG, pWS = S(92, 2), S(94, 2), S(96, 2), S(98, 2)
vLane = V(1)
vT0, vT1, vT2 = V(4), V(5), V(24)
vOl = V(30)
vWd = [V(7 + i) for i in range(4)]
vPa, vSa, vSv, vVal = V(11), V(12), V(0), V(29)
vPv = V(24, 4)
FLAGOFF = 40 << 20
vWr = [V(13 + i) for i in range(8)]
vSt, vRa, vRb, vRc = V(21), V(22), V(23), V(28)
ACC0 = 32
def acc(t, f): return V(ACC0 + f * 28 + t * 4, 4)
def Wset(p, f): return A(192 + 32 * p + 4 * f, 4)
def Oset(p, t):
    q = p * 7 + t
    return A(32 * (q // 4) + 16 + 4 * (q % 4), 4)
def Hold(i): return A(32 * (i // 4) + 4 * (i % 4), 4)
SRD_O1, sO1, sO16 = S(24, 4), S(54), S(44)
def held_store(i):
    ds, t = 2 + i // 7, i % 7
    return [salu("s_add_u32", sT[0], sO16 if t == 6 else sO1, (((ds >> 1) * 16 + (ds & 1)) * 13 + t) * KB), bstore(Hold(i), vOl, SRD_O1, sT[0], 0, "sc1")]
WFLAG = OPT.get("wflag", "")

def inter(mf, gaps):
    out = []
    assert all(0 <= k < len(mf) for k in gaps), (sorted(gaps), len(mf))
    order = lambda i: 0 if i.kind in ("salu", "wait", "barrier", "branch", "label", "smem", "nop") else (1 if i.kind in ("lds_r", "lds_w", "dma", "vmem_l", "vmem_s") else 2)
    for k, m in enumerate(mf):
        out.append(m)
        out.extend(sorted(gaps.get(k, []), key=order))
    return out

def woff(s): return ((s & 14) << 17) + ((s & 16) << 13) + ((s & 1) << 16)
def dma_w(slot, const=None):
    g = []
    for p in range(8):
        ops = []
        if p % 4 == 0 or const is not None:
            ops.append(salu("s_add_u32", "m0", sLd, slot * 8 * KB + (p >> 2) * 4096))
            ops.append(salu("s_add_u32", sTw, sWoff if const is None else sWbase, (p >> 2) * (4096 if OPT.get('lin') else 32768) + (const or 0)))
        ops.append(dma(vWd[p & 3], SRD_W, sTw, (p & 3) * KB, WFLAG))
        g.append(ops)
    return g
def advw():
    return [salu("s_add_u32", sWs, sWs, 1), salu("s_and_b32", sT[2], sWs, 14), salu("s_lshl_b32", sT[2], sT[2], 17), salu("s_add_u32", sWoff, sWbase, sT[2]),
            salu("s_and_b32", sT[2], sWs, 16), salu("s_lshl_b32", sT[2], sT[2], 13), salu("s_add_u32", sWoff, sWoff, sT[2]),
            salu("s_and_b32", sT[2], sWs, 1), salu("s_lshl_b32", sT[2], sT[2], 16), salu("s_add_u32", sWoff, sWoff, sT[2])]
def advo(): return [salu("s_add_u32", sOoff, sOoff, 13 * KB)]
def load_o(p, t):
    ops = []
    if t % 4 == 0: ops.append(salu("s_add_u32", sT[1], sOoff, (t >> 2) * 4096))
    ops.append(bload(Oset(p, t), vOl, SRD_O, sT[1], (t & 3) * KB, "sc1"))
    return ops
def reads_w(s):
    return [ds_r("ds_read_b64_tr_b16", Wset(s & 1, f)[2 * a:2 * a + 2], vWr[f], (s & 3) * 8 * KB + a * 4096) for f in range(8) for a in range(2)]
def poll_load(): return raw(f"global_load_dwordx4 {vPv}, {vPa}, {pWS} sc1", "vmem_l", rd=[vPa], wr=[vPv])
def signal(tag, val):
    return [scmp("s_cmp_lg_u32", sW, 0), branch("s_cbranch_scc1", tag), valu("v_mov_b32", vSv, val), raw("s_mov_b64 exec, 1", "salu"),
            raw(f"global_store_dword {vSa}, {vSv}, {pWS} sc1", "vmem_s", rd=[vSa, vSv]), raw("s_mov_b64 exec, -1", "salu"), label(tag)]
def poll_check(tag, stage):
    o = [salu("s_mov_b32", sT[3], 0x80000), label(tag + "_c"),
         valu("v_min_u32", vPv[0], vPv[0], vPv[1]), valu("v_min3_u32", vPv[0], vPv[0], vPv[2], vPv[3]), nop(1),
         raw(f"v_readfirstlane_b32 {sT[2]}, {vPv[0]}", "valu", rd=[vPv[0]], wr=[sT[2]]),
         salu("s_sub_u32", sT[3], sT[3], 1), branch("s_cbranch_scc1", tag + "_go"),
         scmp("s_cmp_ge_u32", sT[2], stage), branch("s_cbranch_scc1", tag + "_go"),
         raw("s_sleep 2", "other"), poll_load(), wait(vm=0), branch("s_branch", tag + "_c"), label(tag + "_go")]
    return o
def valid_load(): return raw(f"global_load_dword {vVal}, {vT1}, {pDBG} sc1", "vmem_l", rd=[vT1], wr=[vVal])
def valid_check(tag):
    return [salu("s_mov_b32", sT[3], 0x80000), label(tag + "_c"),
            raw(f"v_readfirstlane_b32 {sT[2]}, {vVal}", "valu", rd=[vVal], wr=[sT[2]]),
            salu("s_sub_u32", sT[3], sT[3], 1), branch("s_cbranch_scc1", tag + "_go"),
            scmp("s_cmp_ge_u32", sT[2], 4), branch("s_cbranch_scc1", tag + "_go"),
            raw("s_sleep 8", "other"), valid_load(), wait(vm=0), branch("s_branch", tag + "_c"), label(tag + "_go")]
def flag_addr(dst, b1, head1, tmp):
    return [salu("s_lshr_b32", dst, head1, 3), salu("s_lshl_b32", tmp, b1, 2), salu("s_add_u32", dst, dst, tmp), salu("s_lshl_b32", dst, dst, 7),
            salu("s_and_b32", tmp, head1, 6), salu("s_lshl_b32", tmp, tmp, 1), salu("s_add_u32", dst, dst, tmp), salu("s_add_u32", dst, dst, FLAGOFF)]

OSTRIDE = 2 << 20
vTch = V(5)
sWarm = S(43)
def early_setup(b1, head1):
    P = []; e = P.append
    P += flag_addr(sT[0], b1, head1, sT[1])
    e(valu("v_mov_b32", vSa, sT[0]))
    e(salu("s_and_b32", sT[0], "s2", 7)); e(salu("s_lshr_b32", sT[1], "s2", 3))
    alt = OPT.get("map") == "1"
    e(salu("s_lshr_b32", sB, sT[0], 1)); e(salu("s_lshl_b32", sB, sB, 2)); e(salu("s_lshr_b32" if alt else "s_and_b32", sT[2], sT[1], 3)); e(salu("s_add_u32", sB, sB, sT[2]))
    e(salu("s_lshr_b32", sHALF, sT[1], 2)); e(salu("s_and_b32", sHALF, sHALF, 1))
    e(salu("s_and_b32", sNT, sT[0], 1)); e(salu("s_lshl_b32", sNT, sNT, 2)); e(salu("s_and_b32" if alt else "s_lshr_b32", sT[2], sT[1], 3)); e(salu("s_add_u32", sNT, sNT, sT[2]))
    e(salu("s_lshl_b32", sLd, sW, 15))
    ta, tb = vWd[2], vWd[3]
    e(valu("v_lshrrev_b32", vT0, 4, vLane)); e(valu("v_lshlrev_b32", ta, 1, vT0)); e(valu("v_and_b32", tb, 15, vLane))
    e(valu("v_xor_b32", tb, tb, ta)); e(valu("v_lshlrev_b32", tb, 4, tb)); e(valu("v_lshl_add_u32", vWd[0], vT0, 8 if OPT.get('lin') else 11, tb))
    e(valu("v_lshrrev_b32", ta, 1, vLane)); e(valu("v_and_b32", tb, 1, vLane)); e(valu("v_lshlrev_b32", tb, 7, tb)); e(valu("v_lshl_add_u32", vTch, ta, 8 if OPT.get('lin') else 11, tb))
    PS = 0 if OPT.get('lin') else 7168
    e(valu("v_xor_b32", vWd[1], 128, vWd[0])); e(valu("v_add_u32", vWd[1], PS, vWd[1]))
    e(valu("v_add_u32", vWd[2], 2 * PS, vWd[0])); e(valu("v_add_u32", vWd[3], 2 * PS, vWd[1]))
    e(salu("s_lshl_b32", sWbase, sW, 21))
    e(salu("s_lshl_b32", sWarm, sB, 1)); e(salu("s_add_u32", sWarm, sWarm, sHALF)); e(salu("s_lshl_b32", sWarm, sWarm, 2)); e(salu("s_add_u32", sWarm, sWarm, sW)); e(salu("s_lshl_b32", sWarm, sWarm, 16))
    e(salu("s_mul_i32", sOoff, sW, 32 * 13 * KB)); e(salu("s_mul_i32", sT[0], sHALF, 7 * KB)); e(salu("s_add_u32", sOoff, sOoff, sT[0]))
    e(salu("s_lshl_b32", sT[0], sNT, 13 if OPT.get('lin') else 8))
    e(salu("s_add_u32", SRD_W[0], pWO[0], sT[0])); e(salu("s_addc_u32", SRD_W[1], pWO[1], 0)); e(salu("s_sub_u32", SRD_W[2], 8388608, sT[0])); e(salu("s_mov_b32", SRD_W[3], 0x20000))
    e(salu("s_lshl_b32", sT[0], sB, 21))
    e(salu("s_add_u32", SRD_O[0], pWS[0], sT[0])); e(salu("s_addc_u32", SRD_O[1], pWS[1], 0)); e(salu("s_mov_b32", SRD_O[2], OSTRIDE)); e(salu("s_mov_b32", SRD_O[3], 0x20000))
    e(salu("s_lshl_b32", sT[1], sB, 2)); e(salu("s_add_u32", sT[0], sT[1], sW)); e(salu("s_lshl_b32", sT[0], sT[0], 7)); e(salu("s_add_u32", sT[0], sT[0], FLAGOFF))
    e(valu("v_mov_b32", vPa, sT[0]))
    e(salu("s_mov_b32", sStage, 0)); e(salu("s_mov_b32", sCnt, 0))
    e(salu("s_mov_b32", sWs, 3)); e(salu("s_add_u32", sWoff, sWbase, woff(3)))
    return P
def valid_setup():
    return [salu("s_lshl_b32", sT[1], sB, 2), salu("s_add_u32", sT[0], sT[1], sW), salu("s_lshl_b32", sT[0], sT[0], 2), valu("v_mov_b32", vT1, sT[0]), valid_load()]
def prefetch_groups(): return dma_w(0, woff(0)) + dma_w(1, woff(1)) + dma_w(2, woff(2))
def late_setup(NT):
    P = []; e = P.append
    e(salu("s_mul_i32", sT[0], sB, 425984))
    e(salu("s_add_u32", SRD_C[0], pOUT[0], sT[0])); e(salu("s_addc_u32", SRD_C[1], pOUT[1], 0)); e(salu("s_mov_b32", SRD_C[2], 425984)); e(salu("s_mov_b32", SRD_C[3], 0x20000))
    e(valu("v_lshrrev_b32", vT1, 2, vLane)); e(valu("v_lshlrev_b32", vWr[0], 8, vT1))
    e(valu("v_and_b32", vT1, 7, vT1)); e(valu("v_lshl_add_u32", vWr[0], vT1, 5, vWr[0]))
    e(valu("v_and_b32", vT1, 3, vLane)); e(valu("v_lshl_add_u32", vWr[0], vT1, 3, vWr[0]))
    e(salu("s_lshl_b32", sT[0], sW, 6)); e(valu("v_xor_b32", vWr[0], sT[0], vWr[0]))
    e(valu("v_add_u32", vWr[0], sLd, vWr[0]))
    for f in range(1, 8): e(valu("v_xor_b32", vWr[f], f * 32, vWr[0]))
    return P
def late_setup2(NT):
    P = []; e = P.append
    e(valu("v_and_b32", vT1, 15, vLane)); e(valu("v_lshlrev_b32", vSt, 11, vT1))
    e(valu("v_and_b32", vT1, 1, vT0)); e(valu("v_lshl_add_u32", vSt, vT1, 5, vSt))
    e(valu("v_lshrrev_b32", vT1, 1, vT0)); e(valu("v_lshl_add_u32", vSt, vT1, 4, vSt))
    e(salu("s_mul_i32", sT[2], sHALF, 112 * 2048)); e(salu("s_lshl_b32", sT[3], sNT, 8)); e(salu("s_add_u32", sT[2], sT[2], sT[3]))
    e(salu("s_lshl_b32", sT[3], sW, 6)); e(salu("s_add_u32", sT[2], sT[2], sT[3]))
    e(valu("v_add_u32", vSt, sT[2], vSt))
    for f in range(8):
        for t in range(NT):
            for k in range(4): e(valu("v_mov_b32", acc(t, f)[k], 0))
    return P

class Body:
    def __init__(self, NT, tag, ST):
        self.NT, self.tag, self.ST = NT, tag, ST
    def kstep(self, s, vm, lw=True, lo=True, reads=True, extra=(), poll=False, st=(), head=()):
        NT = self.NT
        mf = [mfma16(acc(t, f), Wset(s & 1, f), Oset(s & 1, t), acc(t, f)) for t in range(NT) for f in range(8)]
        n = len(mf)
        gaps = {}
        add = lambda g, ops: gaps.setdefault(g, []).extend(ops)
        if reads:
            for k, r in enumerate(reads_w(s + 1)): add(1 + 2 * k, [r])
        if poll: add(2, [poll_load()])
        for k, i in enumerate(st): add(13 + 20 * k, held_store(i))
        tailops = []
        if lw:
            pos = [4 + p * (n - 6) // 8 // 2 * 2 for p in range(8)]
            pos = [q + 2 if q % 8 == 0 else q for q in pos]
            for q, g in zip(pos, dma_w((s + 3) & 3)): add(q, g)
            for i, op in enumerate(advw()): add(pos[4] + 1 + i, [op])
        if lo:
            for t in range(NT - 1): add(8 * t + 8, load_o(s & 1, t))
            tailops = load_o(s & 1, NT - 1) + advo()
        return [wait(vm=vm, lgkm=0)] + list(head) + inter(mf, gaps) + tailops + list(extra)
    def build(self):
        NT, ST, tag = self.NT, self.ST, self.tag
        per = 8 + NT
        P = []
        for s in range(2):
            for t in range(NT): P += load_o(s, t)
            P += advo()
        P += late_setup(NT)
        P.append(wait(vm=2 * NT))
        P += reads_w(0)
        P += late_setup2(NT)
        P.append(wait(vm=NT))
        P += ST()
        for s in range(8):
            P += self.kstep(s, per + (2 if 1 <= s else 0), st=(2 * s, 2 * s + 1) if s < 7 else ())
        P += [wait(vm=per), barrier()] + signal(f"L2{tag}_sig2", 2)
        P.append(salu("s_mov_b32", sCnt, 2))
        L = [label(f"L2{tag}_loop")]
        chk = [scmp("s_cmp_lg_u32", sCnt, 3), branch("s_cbranch_scc1", f"L2{tag}_p2_go")] + poll_check(f"L2{tag}_p2", 2)
        for s in range(4):
            L += self.kstep(s, per, poll=(s == 3), head=chk if s == 1 else (),
                            extra=[salu("s_add_u32", sCnt, sCnt, 1), scmp("s_cmp_lt_u32", sCnt, 7), branch("s_cbranch_scc1", f"L2{tag}_loop")] if s == 3 else ())
        T = ST() + self.kstep(0, per) + self.kstep(1, per, lw=False)
        mm = lambda p, fs: [mfma16(acc(t, f), Wset(p, f), Oset(p, t), acc(t, f)) for t in range(NT) for f in fs]
        hiF, loF = (4, 5, 6, 7), (0, 1, 2, 3)
        mf = mm(0, hiF) + mm(1, hiF) + mm(0, loF) + mm(1, loF)
        n4 = 4 * NT
        gaps = {}
        add = lambda g, ops: gaps.setdefault(g, []).extend(ops)
        rd = reads_w(3); rd = rd[8:] + rd[:8]
        for k, r in enumerate(rd): add(k, [r])
        add(1, [valu("v_add_u32", vRa, sLd, vOl)])
        add(2, [salu("s_xor_b32", sT[0], sLd, 2 << 15), valu("v_add_u32", vRb, sT[0], vOl)])
        add(3, [salu("s_xor_b32", sT[0], sLd, 3 << 15), valu("v_add_u32", vRc, sT[0], vOl)])
        add(n4 - 1, [wait(vm=0)])
        wr = [(t, f) for t in range(NT) for f in hiF]
        g0 = n4 + 10
        for i, (t, f) in enumerate(wr): add(g0 + i * (len(mf) - g0) // len(wr), [ds_w("ds_write_b128", vRa, acc(t, f), ((f ^ 6) * NT + t) * KB if False else ((2 * (1 - ((f >> 1) & 1)) + (f & 1)) * NT + t) * KB)])
        T += [wait(vm=NT, lgkm=0)] + inter(mf, gaps)
        Rd = ST()
        e = Rd.append
        def addt(d, g): return [valu("v_pk_add_f32", d[2 * k:2 * k + 2], d[2 * k:2 * k + 2], g[2 * k:2 * k + 2]) for k in range(2)]
        e(wait(lgkm=0)); e(barrier())
        for f in (2, 3):
            for t in range(NT): e(ds_r("ds_read_b128", acc(t, f + 4), vRb, ((f - 2) * NT + t) * KB))
        r2 = [ds_r("ds_read_b128", acc(t, f + 4), vRb, ((2 + f) * NT + t) * KB) for f in (0, 1) for t in range(NT)]
        for f in (2, 3):
            for t in range(NT):
                Rd += addt(acc(t, f), acc(t, f + 4))
                e(ds_w("ds_write_b128", vRb, acc(t, f), ((f - 2) * NT + t) * KB))
                e(r2.pop(0))
        for f in (0, 1):
            for t in range(NT): Rd += addt(acc(t, f), acc(t, f + 4))
        e(wait(lgkm=0)); e(barrier())
        for t in range(NT):
            for f in (0, 1): e(ds_r("ds_read_b128", acc(t, f + 2), vRc, (f * NT + t) * KB))
        for t in range(NT):
            dst = acc(t, 4)
            for f in (0, 1): Rd += addt(acc(t, f), acc(t, f + 2))
            for f in (0, 1):
                for k in range(2): e(valu("v_cvt_pk_bf16_f32", dst[2 * f + k], acc(t, f)[2 * k], acc(t, f)[2 * k + 1]))
            e(salu("s_mov_b32", sT[0], t * 32768)); e(nop(1))
            e(permswap("v_permlane16_swap_b32", dst[0], dst[2])); e(permswap("v_permlane16_swap_b32", dst[1], dst[3]))
            e(bstore(dst, vSt, SRD_C, sT[0], 0, OPT.get('cflag', 'sc1').replace('+', ' ')))
        Rd += ST()
        Rd += ST.dump("s[98:99]", sW, 64 << 20)
        e(raw("s_endpgm"))
        return [P + L + L + T + Rd], P + L + T + Rd

def build_fused(ST):
    P = [label("L1_done")]; e = P.append
    P += poll_check("L2_p1", 1)
    P += ST()
    k0 = ST.k
    e(scmp("s_cmp_eq_u32", sHALF, 1)); e(branch("s_cbranch_scc1", "L2b_start"))
    progs = []
    for NT, tag in ((7, "a"), (6, "b")):
        ST.k = k0
        traces, prog = Body(NT, tag, ST).build()
        for tr in traces:
            for _ in range(5):
                if auto_lgkm(P + tr) == 0: break
            else: raise RuntimeError("lgkm not stable")
        for tr in traces:
            probs = check_hazards(expand(P + tr), "k2")
            for p in probs: print(p)
            assert not probs
        progs.append(prog)
    return text(expand(P + progs[0] + [label("L2b_start")] + progs[1]))
```

```python
import sys, importlib
sys.path.insert(0, "gen")
import k1, k2
HEAD = """; Fused MHA block (Q-projection + cached attention + output projection) for gfx950.
; attn_kernel : one workgroup per (batch, head pair): Q^T = Wq^T x^T, S^T = K Q^T, softmax, O^T = V^T P^T -> ws (MFMA fragment order)
; @launch kernel=attn_kernel grid=(256,1,1) block=(256,1,1) lds=163840
; @launch kernel=oproj_kernel grid=(256,1,1) block=(256,1,1) lds=131072
.amdgcn_target "amdgcn-amd-amdhsa--gfx950"
"""
def khead(n): return f".text\n.globl {n}\n.p2align 8\n.type {n},@function\n{n}:\n"
def desc(n): return f""".section .rodata,"a"
.p2align 6
.amdhsa_kernel {n}
  .amdhsa_next_free_vgpr 512
  .amdhsa_next_free_sgpr 102
  .amdhsa_accum_offset 256
  .amdhsa_group_segment_fixed_size 0
  .amdhsa_kernarg_size 64
  .amdhsa_user_sgpr_count 2
  .amdhsa_user_sgpr_kernarg_segment_ptr 1
  .amdhsa_system_sgpr_workgroup_id_x 1
  .amdhsa_float_denorm_mode_32 3
.end_amdhsa_kernel
"""
stamp = "--stamp" in sys.argv
args = [a for a in sys.argv[1:] if not a.startswith("--")]
out = args[0] if args else "standalone__mha_block_cached__near_ridge.s"
KN = "standalone__mha_block_cached__near_ridge_kernel"
H = HEAD.split("; attn_kernel")[0] + """; one workgroup per (batch, head pair): Q^T = Wq^T x^T, S^T = K Q^T, softmax, O^T = V^T P^T -> ws (MFMA fragment order);
; then, after a per-(batch, head group) hand-off through d_debug counters, out = O wo with a (112|96)x128 tile per workgroup.
; @launch grid=(256,1,1) block=(256,1,1) lds=163840
.amdgcn_target "amdgcn-amd-amdhsa--gfx950"
"""
s = H + khead(KN) + k1.build("k1", stamp, True).replace("attn_kernel", KN) + desc(KN)
open(out, "w").write(s)
print("wrote", out, len(s), "bytes")
```

```python
import re

def R(pre, lo, n=1):
    return [f"{pre}{lo+i}" for i in range(n)]
def rng(pre, lo, n):
    return f"{pre}{lo}" if n == 1 else f"{pre}[{lo}:{lo+n-1}]"

class Reg:
    def __init__(self, f, b, n=1): self.f, self.b, self.n = f, b, n
    def __str__(self): return rng(self.f, self.b, self.n)
    def regs(self): return R(self.f, self.b, self.n)
    def __getitem__(self, i):
        if isinstance(i, slice):
            st = i.start or 0; en = i.stop if i.stop is not None else self.n
            assert 0 <= st < en <= self.n, (st, en, self.n)
            return Reg(self.f, self.b + st, en - st)
        assert 0 <= i < self.n, (i, self.n)
        return Reg(self.f, self.b + i, 1)
def V(b, n=1): return Reg('v', b, n)
def A(b, n=1): return Reg('a', b, n)
def S(b, n=1): return Reg('s', b, n)

def regs_of(x):
    if isinstance(x, Reg): return x.regs()
    if isinstance(x, str):
        if x in ("vcc", "exec", "m0", "scc"): return [x]
        m = re.fullmatch(r"-?\|?([vas])(\d+)\|?", x)
        if m: return [m.group(1) + m.group(2)]
        m = re.fullmatch(r"([vas])\[(\d+):(\d+)\]", x)
        if m: return R(m.group(1), int(m.group(2)), int(m.group(3)) - int(m.group(2)) + 1)
    return []

class I:
    __slots__ = ("text", "kind", "rd", "wr", "post_lgkm", "pre_lgkm", "mf", "nstates", "comment")
    def __init__(self, text, kind, rd=(), wr=(), mf=None, nstates=1):
        self.text, self.kind = text, kind
        self.rd = set(); self.wr = set()
        for x in rd: self.rd.update(regs_of(x))
        for x in wr: self.wr.update(regs_of(x))
        self.post_lgkm = None; self.pre_lgkm = None
        self.mf = mf
        self.nstates = nstates
    def __repr__(self): return self.text

def mfma16(D, Aop, Bop, C):
    c = C if isinstance(C, Reg) else None
    return I(f"v_mfma_f32_16x16x32_bf16 {D}, {Aop}, {Bop}, {C}", "mfma", rd=[Aop, Bop] + ([c] if c else []), wr=[D],
             mf=dict(A=set(Aop.regs()), B=set(Bop.regs()), C=set(c.regs()) if c else set(), D=set(D.regs()), passes=4))
def valu(op, dst, *src, extra="", rmw=False, wr_extra=(), rd_extra=()):
    t = f"{op} {dst}, " + ", ".join(str(s) for s in src) + (" " + extra if extra else "")
    kind = "trans" if op.split("_e")[0] in ("v_exp_f32", "v_rcp_f32", "v_log_f32", "v_rsq_f32") else "valu"
    rd = list(src) + ([dst] if rmw else []) + list(rd_extra)
    return I(t, kind, rd=rd, wr=[dst] + list(wr_extra))
def permswap(op, a, b):
    return I(f"{op} {a}, {b}", "perm", rd=[a, b], wr=[a, b])
def salu(op, dst, *src):
    t = f"{op} {dst}, " + ", ".join(str(s) for s in src)
    return I(t, "salu", rd=list(src), wr=[dst, "scc"])
def scmp(op, a, b):
    return I(f"{op} {a}, {b}", "salu", rd=[a, b], wr=["scc"])
def ds_r(op, dst, addr, off):
    assert 0 <= off < 65536, off
    return I(f"{op} {dst}, {addr} offset:{off}", "lds_r", rd=[addr], wr=[dst])
def ds_w(op, addr, src, off):
    assert 0 <= off < 65536, off
    return I(f"{op} {addr}, {src} offset:{off}", "lds_w", rd=[addr, src])
def dma(voff, srd, soff, off=0, flags=""):
    assert 0 <= off < 4096
    return I(f"buffer_load_dwordx4 {voff}, {srd}, {soff} offen offset:{off}{(' ' + flags) if flags else ''} lds", "dma", rd=[voff, srd, soff, "m0"])
def bload(dst, voff, srd, soff, off=0, flags=""):
    assert 0 <= off < 4096
    op = {1: "dword", 2: "dwordx2", 4: "dwordx4"}[dst.n]
    return I(f"buffer_load_{op} {dst}, {voff}, {srd}, {soff} offen offset:{off}{(' ' + flags) if flags else ''}", "vmem_l", rd=[voff, srd, soff], wr=[dst])
def bstore(src, voff, srd, soff, off=0, flags=""):
    assert 0 <= off < 4096
    op = {1: "dword", 2: "dwordx2", 4: "dwordx4"}[src.n]
    return I(f"buffer_store_{op} {src}, {voff}, {srd}, {soff} offen offset:{off}{(' ' + flags) if flags else ''}", "vmem_s", rd=[src, voff, srd, soff])
def wait(vm=None, lgkm=None):
    t = "s_waitcnt" + (f" vmcnt({vm})" if vm is not None else "") + (f" lgkmcnt({lgkm})" if lgkm is not None else "")
    i = I(t, "wait"); i.mf = dict(vm=vm, lgkm=lgkm); return i
def nop(n):
    assert 1 <= n <= 16
    return I(f"s_nop {n-1}", "nop", nstates=n)
def barrier(): return I("s_barrier", "barrier")
def label(n): return I(f"{n}:", "label", nstates=0)
def branch(op, tgt): return I(f"{op} {tgt}", "branch", rd=["scc", "vcc"])
def raw(t, kind="other", rd=(), wr=()): return I(t, kind, rd=rd, wr=wr)
def comment(t): return I("; " + t, "label", nstates=0)

def auto_lgkm(trace):
    changes = 0
    pend = []
    last_mfma = None
    for idx, ins in enumerate(trace):
        def apply(n):
            nonlocal pend
            if n is not None and len(pend) > n: pend = pend[len(pend) - n:] if n else []
        apply(ins.pre_lgkm)
        if ins.kind == "wait": apply(ins.mf["lgkm"])
        touched = ins.rd | ins.wr
        need = -1
        for k, (ti, rg) in enumerate(pend):
            if rg & touched: need = k
        if need >= 0:
            ti = pend[need][0]
            if last_mfma is not None and last_mfma > ti and all(trace[q].kind not in ("label", "branch") or trace[q].text.startswith(";") for q in range(last_mfma, idx)):
                n = sum(1 for (t2, _) in pend[need + 1:] if t2 < last_mfma)
                q = trace[last_mfma]
                if q.post_lgkm is None or q.post_lgkm > n: q.post_lgkm = n; changes += 1
            else:
                n = len(pend) - need - 1
                if ins.pre_lgkm is None or ins.pre_lgkm > n: ins.pre_lgkm = n; changes += 1
            pend = pend[need + 1:]
        if ins.kind in ("lds_r", "lds_w") and len(pend) >= 15:
            if last_mfma is not None and last_mfma > pend[-1][0] and all(trace[q].kind not in ("label", "branch") or trace[q].text.startswith(";") for q in range(last_mfma, idx)):
                q = trace[last_mfma]
                if q.post_lgkm is None or q.post_lgkm > 8: q.post_lgkm = 8; changes += 1
            else:
                if ins.pre_lgkm is None or ins.pre_lgkm > 8: ins.pre_lgkm = 8; changes += 1
            pend = pend[-8:]
        if ins.kind == "lds_r": pend.append((idx, set(ins.wr)))
        elif ins.kind == "lds_w": pend.append((idx, set()))
        if ins.kind == "mfma": last_mfma = idx
        apply(ins.post_lgkm)
    return changes

def expand(seq):
    out = []
    for ins in seq:
        if ins.pre_lgkm is not None: out.append(wait(lgkm=ins.pre_lgkm))
        out.append(ins)
        if ins.post_lgkm is not None: out.append(wait(lgkm=ins.post_lgkm))
    return out

VALUK = ("valu", "trans", "perm")
def check_hazards(trace, name=""):
    probs = []
    pos = []; p = 0
    for ins in trace:
        pos.append(p); p += ins.nstates
    n = len(trace)
    def dist(i, j):
        return pos[j] - pos[i] - trace[i].nstates
    for i, a in enumerate(trace):
        if a.kind in ("label", "nop", "wait", "barrier", "branch"): continue
        for j in range(i + 1, min(n, i + 40)):
            b = trace[j]
            d = dist(i, j)
            if d >= 20: break
            need = 0; why = ""
            if a.kind == "mfma":
                D = a.mf["D"]
                if b.kind == "mfma":
                    if D & (b.mf["A"] | b.mf["B"]): need, why = 8, "mfma D->A/B"
                    elif D & b.mf["C"] and b.mf["C"] != D: need, why = 6, "mfma D->C partial"
                elif b.kind in VALUK + ("lds_r", "lds_w", "vmem_l", "vmem_s", "dma"):
                    if D & (b.rd | b.wr): need, why = 8, "mfma D->valu/mem"
                if b.kind in VALUK and a.mf["C"] & b.wr: need, why = max(need, 3), why + " srcC WAR"
            if a.kind in VALUK:
                vw = {r for r in a.wr if r[0] in "va" and r != "vcc"}
                sw = {r for r in a.wr if r[0] == "s" or r == "vcc"}
                if b.kind == "mfma" and vw & b.rd: need, why = max(need, 2), "valu->mfma"
                if b.kind == "perm" and vw & b.rd: need, why = max(need, 2), "valu->perm"
                if a.kind == "trans" and b.kind in ("valu", "perm") and vw & b.rd: need, why = max(need, 1), "trans->valu"
                if ("readfirstlane" in b.text or "readlane" in b.text) and vw & b.rd: need, why = max(need, 1), "valu->readlane"
                if sw & b.rd and b.kind in ("vmem_l", "vmem_s", "dma"): need, why = max(need, 5), "valu sgpr->vmem"
                if sw & b.rd and b.kind in VALUK: need, why = max(need, 2), "valu sgpr->valu"
            if a.kind == "salu" and "m0" in a.wr and b.kind == "dma": need, why = max(need, 1), "m0->dma"
            if a.kind == "vmem_s" and "x4" in a.text and b.kind in VALUK and (a.rd & b.wr): need, why = max(need, 2), "store data WAR"
            if need > d:
                probs.append(f"{name}: hazard {why}: need {need} have {d}:\n    {a.text}\n    {b.text}")
    return probs

def text(seq):
    out = []
    for ins in seq:
        out.append(ins.text if ins.kind == "label" and not ins.text.startswith(";") else "  " + ins.text)
    return "\n".join(out) + "\n"

class Stamps:
    def __init__(self, on, base=60, n=16): self.on, self.base, self.n, self.k = on, base, n, 0
    def __call__(self):
        if not self.on: return []
        k = self.k; self.k += 1; assert k < self.n
        import os
        return [raw(f"{os.environ.get('STOP', 's_memrealtime')} s[{self.base+2*k}:{self.base+2*k+1}]", "smem")]
    def dump(self, wsreg, wave_sgpr, off):
        if not self.on: return []
        o = [raw("s_waitcnt vmcnt(0) lgkmcnt(0)", "other")] + self() + [raw("s_waitcnt lgkmcnt(0)", "other")]
        o.append(raw(f"s_lshl_b32 s58, s2, 2", "salu")); o.append(raw(f"s_add_u32 s58, s58, {wave_sgpr}", "salu"))
        o.append(raw(f"s_mul_i32 s58, s58, {self.n*8}", "salu")); o.append(raw(f"s_add_u32 s58, s58, {off}", "salu"))
        o.append(raw("v_mov_b32 v7, s58", "other")); o.append(raw("s_mov_b64 exec, 1", "other"))
        for i in range(self.n):
            o += [raw(f"v_mov_b32 v4, s{self.base+2*i}", "other"), raw(f"v_mov_b32 v5, s{self.base+2*i+1}", "other"),
                  raw(f"global_store_dwordx2 v7, v[4:5], {wsreg} offset:{8*i}", "other"), raw("s_nop 1", "other")]
        import os
        if os.environ.get("DBGST"):
            for i in range(1, self.n):
                o += [raw(f"s_sub_u32 s58, s{self.base+2*i}, s{self.base}", "salu"), raw("s_lshl_b32 s58, s58, 8", "salu"), raw("s_or_b32 s58, s58, 4", "salu"),
                      raw("v_mov_b32 v4, s58", "other"), raw(f"v_mov_b32 v7, {4*i}", "other"),
                      raw(f"global_atomic_{os.environ['DBGST']} v7, v4, s[96:97] sc1", "other"), raw("s_nop 1", "other")]
        o.append(raw("s_waitcnt vmcnt(0)", "other"))
        return o
```

```python
from fw import *
import struct, os
import k2
OPT = dict(kv.split('=') for kv in os.environ.get('K1OPT', '').split(',') if kv)
def f32(x): return "0x%08x" % struct.unpack("<I", struct.pack("<f", x))[0]
KB = 1024
QSCALE = 1.4426950408889634 * (128 ** -0.5)

sW, sHH, sHALF, sB, sHEAD = S(3), S(4), S(5), S(6), S(7)
SRD_X, SRD_W, SRD_K, SRD_V, SRD_O = S(8, 4), S(12, 4), S(16, 4), S(20, 4), S(24, 4)
sRot = S(39)
sXld, sWld, sSPld = S(40), S(41), S(42)
sXoff, sWoff, sKoff = S(43), S(44), S(45)
sT = [S(46), S(47), S(48), S(49)]
sCnt, sFB = S(50), S(51)
sScale = S(52, 2)
sOoff, sKlin = S(54), S(55)
sTmp2 = S(56, 2)
def kadv(): return [salu('s_add_u32', sKlin, sKlin, 8192), salu('s_xor_b32', sKoff, sKlin, sRot)]

vLane, vT0, vT1, vT2 = V(1), V(2), V(3), V(29)
vXd, vWd, vKd, vKd2 = V(4), V(5), V(6), V(31)
vXr = [V(7), V(8)]
vWr = [V(9 + i) for i in range(4)]
vKr = [V(13 + i) for i in range(4)]
vVr = [V(17 + i) for i in range(7)] + [V(28)]
vKs = [V(24 + i) for i in range(4)]
vOst = V(30)
ACC0 = 32
def acc(t, f): return V(ACC0 + t * 32 + f * 4, 4)
def Qf(t, ds): return V(ACC0 + t * 32 + ds * 4, 4)
def fr(t, o, n): return V(ACC0 + t * 32 + 16 + o, n)
def Cm(t): return fr(t, 0, 4)
def Lr(t): return fr(t, 4, 1)
def Tm(t): return fr(t, 5, 1)
def Tm2(t): return fr(t, 6, 2)
SB = [fr(0, 8, 8), fr(1, 8, 8)]
PB = [fr(2, 8, 4), fr(2, 12, 4)]
def O6(dt): return fr(3 + (dt >> 1), 8 + 4 * (dt & 1), 4)
def Oacc(t, dt): return A(t * 32 + dt * 4, 4) if t < 6 else O6(dt)
QB = int(OPT.get('qb', '0'))
vXr6 = [V(224), V(225)]
def Kf(f): return A(192 + 4 * f, 4)
def Vf(dt): return A(224 + 4 * dt, 4)
def Wset(p, f): return A(112 + 32 * p + 4 * f, 4)
def Xset(p, t): return A(28 * p + 4 * t, 4)

def inter(mf, gaps):
    out = []
    assert all(0 <= k < len(mf) for k in gaps), (sorted(gaps), len(mf))
    order = lambda i: 0 if i.kind in ("salu", "wait", "barrier", "branch", "label", "smem", "nop") else (1 if i.kind in ("lds_r", "lds_w", "dma", "vmem_l", "vmem_s") else 2)
    for k, m in enumerate(mf):
        out.append(m)
        out.extend(sorted(gaps.get(k, []), key=order))
    return out
flat = lambda gs: [o for g in gs for o in g]

def wchunk(s): return (1 + 4 * (s & 1) + 2 * ((s >> 1) & 1)) * 8 * KB

def dma_w(s):
    g = []
    for p in range(8):
        ops = []
        if p % 4 == 0: ops.append(salu("s_add_u32", "m0", sWld, wchunk(s) + (p >> 2) * 4096))
        ops.append(salu("s_add_u32", sT[p & 1], sWoff, p * 32768 - (p & 3) * KB))
        ops.append(dma(vWd, SRD_W, sT[p & 1], (p & 3) * KB))
        g.append(ops)
    g[-1] = g[-1] + [salu("s_add_u32", sWoff, sWoff, 262144)]
    return g
def dma_x(par, lo, hi):
    g = []
    for T in range(lo, hi):
        fh, t = (0, T) if T < 7 else (1, T - 7)
        ops = [salu("s_add_u32", "m0", sXld, fh * 64 * KB + par * 16 * KB + t * KB), salu("s_add_u32", sT[T & 1], sXoff, T * 32768),
               dma(vXd, SRD_X, sT[T & 1], 0)]
        g.append(ops)
    if hi == 13: g[-1] = g[-1] + [salu("s_add_u32", sXoff, sXoff, 128)]
    return g
KVF = OPT.get("kvflag", "nt").replace("none", "")
def dma_kv(which, base, off):
    srd = SRD_K if which == "K" else SRD_V
    g = []
    for p in range(8):
        pre = [salu("s_add_u32", "m0", base, off + (p >> 2) * 4096)] if p % 4 == 0 else []
        g.append((pre, dma(vKd if p < 4 else vKd2, srd, sKoff, (p & 3) * KB, KVF)))
    return g
DEPTH = int(OPT.get("depth", "7"))
if DEPTH > 60: DEPTH = None
LEAD = int(OPT.get("lead", "3"))
DFRAC = int(OPT.get("dfrac", "0"))
def kv_groups(g, depth=None): return [pre + ([wait(vm=depth)] if depth is not None else []) + ([nop(1)] if pre and depth is None else []) + [d] for pre, d in g]

def reads_w(s):
    r = []
    for f in range(8):
        ds, T = f >> 1, f & 1
        for a in range(2):
            r.append(ds_r("ds_read_b64_tr_b16", Wset(s & 1, f)[2 * a:2 * a + 2], vWr[ds], wchunk(s) + a * KB + 8 * T))
    return r
def read_k(f, addr, off): return ds_r("ds_read_b128", Kf(f), addr[f & 3], off + (f >> 2) * 2048)
def read_v(dt, kt, addr, off): return ds_r("ds_read_b64_tr_b16", Vf(dt)[2 * kt:2 * kt + 2], addr[dt], off + kt * 2048)

def qk_block(t, sb, cinit=True):
    mf = []
    for kt in range(2):
        D = SB[sb][4 * kt:4 * kt + 4]
        for ds in range(4):
            mf.append(mfma16(D, Kf(4 * kt + ds), Qf(t, ds), (Cm(t) if cinit else 0) if ds == 0 else D))
    return mf
def pv_block(t, sb, first=False):
    return [mfma16(Oacc(t, dt), Vf(dt), PB[sb], 0 if first else Oacc(t, dt)) for dt in range(8)]
def E(sb, i): return valu("v_exp_f32", SB[sb][i], SB[sb][i])
def AD(t, sb, i): return valu("v_add_f32", Lr(t), Lr(t), SB[sb][i])
def CV(sb, k): return valu("v_cvt_pk_bf16_f32", PB[sb][k], SB[sb][2 * k], SB[sb][2 * k + 1])
def sm_half(t, sb, h):
    o = 4 * h
    return {0: [AD(t, sb, o)], 1: [E(sb, o + 1)], 2: [AD(t, sb, o + 1), CV(sb, 2 * h)], 3: [E(sb, o + 2)],
            4: [AD(t, sb, o + 2)], 5: [E(sb, o + 3)], 6: [AD(t, sb, o + 3), CV(sb, 2 * h + 1)]}

def xgroup_reduce(op, regs, tmps):
    o = []
    for sw in ("v_permlane16_swap_b32", "v_permlane32_swap_b32"):
        for r, t in zip(regs, tmps): o.append(valu("v_mov_b32", t, r))
        o.append(nop(2))
        for r, t in zip(regs, tmps): o.append(permswap(sw, r, t))
        o.append(nop(1))
        for r, t in zip(regs, tmps): o.append(valu(op, r, r, t))
    return o

class Role:
    def __init__(self, NT, loader, tag, ST):
        self.NT, self.loader, self.tag, self.ST = NT, loader, tag, ST
    def L(self, n): return f"L1{self.tag}_{n}"
    def tf(self):
        l = [(t, f) for t in range(6) for f in range(8)]
        return l + [(6, f) for f in (range(8 - 2 * QB, 8) if self.loader else range(8 - 2 * QB))]
    def reads_x(self, a):
        r = [ds_r("ds_read_b128", Xset((a & 1) * 2 + sp, t), vXr[sp], (a & 1) * 16 * KB + t * KB) for sp in range(2) for t in range(self.NT)]
        if self.loader and QB: r += [ds_r("ds_read_b128", Xset((a & 1) * 2 + sp, 6), vXr6[sp], (a & 1) * 16 * KB + 6 * KB) for sp in range(2)]
        return r
    def kstep(self, s, vm, reads, dmas, extra=None, vma=None):
        NT = self.NT
        a = s >> 1
        mf = [mfma16(acc(t, f), Wset(s & 1, f), Xset((a & 1) * 2 + (s & 1), t), acc(t, f)) for t, f in self.tf()]
        gaps = {}
        n = len(mf)
        span = n - 10
        for i, r in enumerate(reads): gaps.setdefault(i * span // max(len(reads), 1), []).append(r)
        if OPT.get("noqdma") and not any("s[16:19]" in str(o) for g in dmas for o in g): dmas = [[o for o in g if o.kind != "dma"] for g in dmas]
        if OPT.get("noqread"): gaps = {}
        if self.loader:
            pos = [1 + i * (n - 3) // max(len(dmas), 1) for i in range(len(dmas))]
            assert len(set(pos)) == len(pos)
            for k, g in zip(pos, dmas): gaps.setdefault(k, []).extend(g)
        for k, ops in (extra or {}).items(): gaps.setdefault(k, []).extend(ops)
        head = [wait(vm=vm if self.loader else vma, lgkm=0)] + ([] if OPT.get("noqbar") else [barrier()])
        return head + inter(mf, gaps)
    def period(self, j, first=False, exit_label=None, wot=False):
        NT = self.NT
        out = []
        slot_cur = (j - 1) & 3
        slot_nxt = j & 3
        H = 2 * NT
        dm = []
        dmpos = {}
        advpos = None
        if LEAD == 4:
            if self.loader and not first:
                dm = dma_kv("K", sWld, slot_cur * 8 * KB) + dma_kv("V", sWld, 32 * KB + slot_cur * 8 * KB)
                slots = [(hs, g) for hs in range(2, H) for g in (3, 7)][:-1]
                advpos = (H - 1, 5)
        elif self.loader:
            dm = dma_kv("V", sWld, 32 * KB + ((j + 2) & 3) * 8 * KB) + dma_kv("K", sWld, slot_cur * 8 * KB)
            slots = [(hs, g) for hs in range(H) for g in (3, 7)]
        for i, x in enumerate(dm):
            hs, g = slots[i * len(slots) // len(dm)]
            dmpos.setdefault(hs, []).append((g, x))
            if LEAD != 4 and i == 8:
                assert g == 3 and slots[7 * len(slots) // len(dm)] <= (hs - 1, 3) and hs >= 2
                advpos = (hs - 1, 5)
        for hs in range(H):
            t = hs >> 1
            sb = (j * NT + t) & 1
            tn = (t + 1) % NT
            if hs % 2 == 0:
                mf = qk_block(tn, sb ^ 1); gaps = sm_half(t, sb, 1); gaps[7] = [E(sb ^ 1, 0)]
            else:
                mf = pv_block(t, sb, first); gaps = sm_half(tn, sb ^ 1, 0); gaps[7] = [E(sb ^ 1, 4)]
            def add(g, ops): gaps.setdefault(g, []).extend(ops)
            if hs == 0 and not first:
                for g in range(8): add(g, [read_v(4 + (g >> 1), g & 1, vVr, slot_cur * 8 * KB)])
            if hs == H - 1:
                for g in range(8): add(g, [read_v(g >> 1, g & 1, vVr, slot_nxt * 8 * KB)])
            if hs in (H - 4, H - 3):
                for q in range(4): add(2 * q, [read_k(4 * (hs - (H - 4)) + q, vKr, slot_nxt * 8 * KB)])
            if hs == 1:
                add(7, ([wait(vm=(48 if first else 32) if LEAD == 4 else 16)] if self.loader else []) + [barrier()])
            if dm:
                for gi, (pre, d) in dmpos.get(hs, []):
                    add(gi - 2, pre)
                    if DEPTH is not None:
                        self.dcnt = getattr(self, "dcnt", 0) + 1
                        add(gi - 1, [wait(vm=DEPTH + (1 if (self.dcnt * DFRAC) % 4 < DFRAC else 0))])
                    add(gi, [d])
            if wot and hs in wot:
                it, srd, voff, off = wot[hs]
                pre = [salu("s_add_u32", sT[1], off[0], off[1])] if isinstance(off, tuple) else [salu("s_mov_b32", sT[1], off)]
                add(0, pre); add(4, [scmp("s_cmp_eq_u32", sCnt, it), salu("s_cselect_b32", sT[0], sT[1], 0x1000000), bload(vT2, voff, srd, sT[0])])
            if advpos and hs == advpos[0]: add(advpos[1], kadv()[:1]); add(advpos[1] + 1, kadv()[1:])
            if exit_label and hs == H - 3:
                add(7, [scmp("s_cmp_eq_u32", sCnt, 7)])
            out += inter(mf, gaps)
            if exit_label and hs == H - 3:
                out.append(branch("s_cbranch_scc1", exit_label))
        return out

    def build(self):
        NT, ST, L = self.NT, self.ST, self.L
        ld = self.loader
        P = [label(L("start"))]
        e = P.append
        if ld:
            P += flat(dma_w(0)) + flat(dma_x(0, 0, 13)) + flat(dma_w(1))
        P += common_addr()
        for t, f in self.tf():
            for k in range(4): e(valu("v_mov_b32", acc(t, f)[k], 0))
        if ld and QB:
            for sp in range(2): e(valu("v_subrev_u32", vXr6[sp], 64 * KB, vXr[sp]))
        NM = len(self.tf())
        if ld:
            e(salu("s_add_u32", sXoff, sXoff, 128)); e(salu("s_add_u32", sWoff, sWoff, 262144))
            P += kadv()
            e(wait(vm=8))
        else:
            e(salu("s_mov_b32", sXoff, 128)); e(salu("s_mov_b32", sWoff, 2 * 262144))
            P += flat(dma_x(1, 0, 13)) + flat(dma_w(2))
        e(barrier())
        P += ST()
        P += reads_w(0) + self.reads_x(0)
        if ld:
            P += flat(dma_w(3)) + [wait(vm=8)]
        else:
            for k in range(4): e(salu("s_mov_b32", SRD_X[k], SRD_K[k] if k < 3 else 0x20000))
            e(salu("s_mov_b32", sXld, sSPld))
            e(valu("v_mov_b32", vXd, vKd))
            e(valu("v_lshlrev_b32", vWd, 7, vLane))
            if OPT.get("codepf", "1") == "1": P += code_touch()
            P += k2.flag_addr(sT[0], sB, sHEAD, sT[1])
            P += [scmp("s_cmp_lg_u32", sW, 0), branch("s_cbranch_scc1", L("norst")), valu("v_mov_b32", vT0, sT[0]), valu("v_mov_b32", vT1, 0), raw("s_mov_b64 exec, 1", "salu"),
                  raw(f"global_store_dword {vT0}, {vT1}, s[98:99] sc1", "vmem_s", rd=[vT0, vT1]), raw("s_mov_b64 exec, -1", "salu"), label(L("norst"))]
        def qloop(name, last, bg):
            QL = [label(L(name))]
            for s in range(4):
                reads = reads_w(s + 1) + (self.reads_x((s + 1) >> 1) if s & 1 else [])
                dmas = (dma_x(s >> 1, 0, 7) if s % 2 == 0 else dma_x(s >> 1, 7, 13)) + dma_w(s)
                extra = bg(s) if not ld else {}
                if s == 3: extra.update({NM - 2: [salu("s_add_u32", sCnt, sCnt, 1)], NM - 1: [scmp("s_cmp_lt_u32", sCnt, last)]})
                QL += self.kstep(s, 29 if s % 2 == 0 else 23, reads, dmas, extra, vma=1 if (s == 1 and name == "qloopA") else None)
            QL.append(branch("s_cbranch_scc1", L(name)))
            return QL
        def bgA(s):
            x = {3: [dma(vXd, SRD_X, sKoff, s * KB, KVF)]}
            if s == 0: x[1] = [salu("s_mov_b32", "m0", sXld)]
            if s == 3:
                x[5] = [salu("s_add_u32", sXld, sXld, 4096), valu("v_xor_b32", vXd, 0x1080, vXd)]
                x[7] = [scmp("s_cmp_eq_u32", sCnt, 1)]
                x[8] = [salu("s_cselect_b32", SRD_X[0], SRD_V[0], SRD_X[0])]
                x[9] = [salu("s_cselect_b32", SRD_X[1], SRD_V[1], SRD_X[1])]
            return x
        def touch(w): return bload(vKd2, vWd, SRD_K if w == "K" else SRD_V, sKoff, 0, OPT.get("pfflag", ""))
        NPF = int(OPT.get("npf", "0"))
        def bgB(s):
            if not NPF: return {}
            if s == 0: return {1: kadv()[:1], 2: kadv()[1:], 3: [touch("K")]}
            if s == 2: return {3: [touch("V")]}
            return {}
        def bgT(s):
            if NPF < 2 or ld: return {}
            if s % 2 == 0: return {1: kadv()[:1], 2: kadv()[1:], 3: [touch("K")]}
            return {3: [touch("V")]}
        if ld:
            QL = qloop("qloop", 7, None)
            QLt = QL + QL
        else:
            LA, LB = qloop("qloopA", 4, bgA), qloop("qloopB", 7, bgB)
            CN = [scmp("s_cmp_lg_u32", sW, 0), branch("s_cbranch_scc1", L("nocnt")),
                  salu("s_lshr_b32", sT[0], sHEAD, 3), salu("s_lshl_b32", sT[1], sB, 2), salu("s_add_u32", sT[0], sT[0], sT[1]), salu("s_lshl_b32", sT[0], sT[0], 2),
                  valu("v_mov_b32", vT0, sT[0]), valu("v_mov_b32", vT1, 1), raw("s_mov_b64 exec, 1", "salu"),
                  raw(f"global_atomic_add {vT0}, {vT1}, s[96:97] sc1", "vmem_s", rd=[vT0, vT1]), raw("s_mov_b64 exec, -1", "salu"), label(L("nocnt"))]
            QL = LA + CN + LB
            QLt = LA + LA + CN + LB + LB
        QT = ST()
        kvg = lambda w, off: kv_groups(dma_kv(w, sWld, off), DEPTH)
        vVs = [V(0), vT0, vT1, vT2] + vKs
        spv = [salu("s_sub_u32", sT[2], sSPld, sWld), salu("s_sub_u32", sT[2], sT[2], 24 * KB)]
        def mrg(a, b):
            for k, v in b.items(): a.setdefault(k, []).extend(v)
            return a
        if LEAD == 4: qd = [kvg("K", 8 * i * KB) + kvg("V", (32 + 8 * i) * KB) + [kadv()] for i in range(4)]; qw = (24, 32)
        else: qd = [kvg("K", 0), kvg("V", 32 * KB) + [kadv()], kvg("K", 8 * KB), kvg("V", 40 * KB) + [kadv()]]; qw = (16, 16)
        QT += self.kstep(0, 29, reads_w(1), qd[0], bgT(0), vma=6 if NPF else 0)
        QT += self.kstep(1, qw[0], reads_w(2) + self.reads_x(1), qd[1], bgT(1))
        QT += self.kstep(2, qw[1], [read_k(f, vKs, 0) for f in range(8)] + reads_w(3), qd[2],
                         mrg(bgT(2), {30: spv, **{32 + dt: [valu("v_add_u32", vVs[dt], sT[2], vVr[dt])] for dt in range(8)}}))
        QT += self.kstep(3, None, [read_v(dt, kt, vVs, 0) for dt in range(8) for kt in range(2)], qd[3], bgT(3))
        tk = kvg("K", 16 * KB) if (ld and LEAD != 4) else []
        T = ST()
        e = T.append
        T += k2.early_setup(sB, sHEAD)
        e(salu("s_mov_b32", k2.sO16, 0x1000000 if ld else sOoff))
        def conv(t, dss=range(4)):
            o = []
            for ds in dss:
                src = V(ACC0 + t * 32 + ds * 8, 8)
                for k in range(4): o.append(valu("v_pk_mul_f32", src[2 * k:2 * k + 2], src[2 * k:2 * k + 2], sScale))
                for k in range(4): o.append(valu("v_cvt_pk_bf16_f32", Qf(t, ds)[k], src[2 * k], src[2 * k + 1]))
            return o
        def prepass(t): return [mfma16(Cm(t), Kf(ds), Qf(t, ds), 0 if ds == 0 else Cm(t)) for ds in range(4)]
        vXf = vT2
        if QB:
            e(valu("v_add_u32", vXf, sSPld, vOst))
            if ld:
                T += conv(6, range(4 - QB, 4))
                for ds in range(4 - QB, 4): e(ds_w("ds_write_b128", vXf, Qf(6, ds), ds * KB))
            else:
                T += conv(6, range(4 - QB))
        for t in range(6 if QB else NT):
            c = conv(t)
            if t:
                pp = prepass(t - 1)
                c = c[:4] + pp + c[4:]
            for _ in range(2 if t < 2 else 1):
                if tk: c = tk.pop(0) + c if _ == 0 else c[:18] + tk.pop(0) + c[18:]
            T += c
            if QB and t == 1:
                T += [wait(lgkm=0), barrier()]
                if not ld:
                    for ds in range(4 - QB, 4): e(ds_r("ds_read_b128", Qf(6, ds), vXf, ds * KB))
            if QB and t == 3 and not ld: T += prepass(6)
        e(nop(2))
        T += prepass(5 if QB else NT - 1)
        for t in range(NT): e(valu("v_mov_b32", Lr(t), 0))
        e(nop(2))
        for t in range(NT): e(valu("v_max3_f32", Cm(t)[0], Cm(t)[0], Cm(t)[1], Cm(t)[2]))
        for t in range(NT): e(valu("v_max_f32", Cm(t)[0], Cm(t)[0], Cm(t)[3]))
        T += xgroup_reduce("v_max_f32", [Cm(t)[0] for t in range(NT)], [Cm(t)[1] for t in range(NT)])
        for k in (3, 2, 1, 0): e(valu("v_sub_f32", Cm(0)[k], 0, Cm(0)[0]))
        e(salu("s_mov_b32", sCnt, 0)); e(nop(1))
        rest = [valu("v_sub_f32", Cm(t)[k], 0, Cm(t)[0]) for t in range(1, NT) for k in (3, 2, 1, 0)]
        T += inter(qk_block(0, 0), {k: rest[3 * k:3 * k + 3] for k in range(8)})
        e(nop(4))
        for i in range(4): e(E(0, i))
        e(E(0, 4))
        for i in range(4): e(AD(0, 0, i))
        e(CV(0, 0)); e(CV(0, 1))
        A0 = ST() + self.period(0, first=True)
        w1 = {} if ld else {2: (7, k2.SRD_W, k2.vTch, (k2.sWarm, 0)), 4: (7, k2.SRD_W, k2.vTch, (k2.sWarm, 65536))}
        AL = [label(L("aloop"))] + self.period(1, wot=w1) + self.period(2)
        ALa = self.period(3, exit_label=L("tail"))
        cut = max(i for i, x in enumerate(ALa) if x.kind == "branch") + 1
        ALb = self.period(4) + [salu("s_add_u32", sCnt, sCnt, 1), branch("s_branch", L("aloop"))]
        TL = [label(L("tail"))] + ST()
        sb = (3 * NT + NT - 1) & 1
        g = sm_half(NT - 1, sb, 1)
        for k in (1, 3, 5): TL += g[k]
        TL.append(nop(1))
        for k in (0, 2, 4, 6): TL += g[k]
        TL.append(nop(2))
        TL += pv_block(NT - 1, sb)
        TL += k2.valid_setup()
        TL += [wait(vm=0), barrier()]
        TL += k2.valid_check(L("val"))
        if OPT.get("jst"): TL += ST()
        EP = [label(L("epi"))]
        e = EP.append
        EP += xgroup_reduce("v_add_f32", [Lr(t) for t in range(NT)], [Tm(t) for t in range(NT)])
        vChk, vChl = vT0, vT1
        e(valu("v_mov_b32", vChk, 0)); e(valu("v_mov_b32", vChl, 0))
        for t in range(0, NT - 1, 2): e(valu("v_maximum3_f32", vChl, Lr(t), Lr(t + 1), vChl))
        if NT % 2: e(valu("v_maximum3_f32", vChl, Lr(NT - 1), Lr(NT - 1), vChl))
        for t in range(NT): e(valu("v_rcp_f32", Tm2(t)[0], Lr(t)))
        e(salu("s_mov_b32", sT[1], f32(2.0 ** 28))); e(valu("v_mul_f32", vChk, sT[1], vChl))
        pf = k2.prefetch_groups()
        cnt = [0]
        def frag(t, ds):
            o = []
            n = cnt[0]; cnt[0] += 1
            st = SB[n & 1]; ob = PB[n & 1]
            if t < 6:
                for k in range(8): o.append(valu("v_accvgpr_read_b32", st[k], A(t * 32 + ds * 8 + k)))
                src = st
            else:
                src = V(O6(2 * ds).b, 8)
            if pf and not OPT.get("latepf"): o += pf.pop(0)
            for k in range(4): o.append(valu("v_maximum3_f32", vChk, f"|{src[2*k]}|", f"|{src[2*k+1]}|", vChk))
            for k in range(4): o.append(valu("v_pk_mul_f32", st[2 * k:2 * k + 2], src[2 * k:2 * k + 2], Tm2(t), extra="op_sel_hi:[1,0]"))
            for k in range(4): o.append(valu("v_cvt_pk_bf16_f32", ob[k], st[2 * k], st[2 * k + 1]))
            if ds < 2:
                o.append(salu("s_add_u32", sT[0], sOoff, (((ds >> 1) * 16 + (ds & 1)) * 13 + t) * KB))
                o.append(bstore(ob, vOst, SRD_O, sT[0], 0, "sc1"))
            else:
                for k in range(4): o.append(valu("v_accvgpr_write_b32", k2.Hold((ds - 2) * 7 + t)[k], ob[k]))
            return o
        def check(tag):
            return [salu("s_mov_b32", sT[0], 0x7f800000), raw(f"v_cmp_ngt_f32 vcc, {sT[0]}, {vChk}", "valu", rd=[sT[0], vChk], wr=["vcc"]),
                    scmp("s_cmp_lg_u32", sFB, 0), branch("s_cbranch_scc1", L(tag)), nop(4), branch("s_cbranch_vccnz", L("fb")), label(L(tag))]
        nvm = lambda seq: sum(1 for x in seq if x.kind in ("dma", "vmem_l", "vmem_s"))
        e(scmp("s_cmp_lg_u32", k2.sStage, 0)); e(branch("s_cbranch_scc1", L("epi2")))
        hold_pf = pf[:]; del pf[:]
        for ds in range(2):
            for t in range(NT): EP += frag(t, ds)
        EP += check("ck1")
        if OPT.get("jst"): EP += ST()
        e(label(L("epi2")))
        fr2 = [(t, ds) for ds in (2, 3) for t in range(NT)]
        SIGK = int(OPT.get("sigk", "6")); PK = int(OPT.get("pollk", "1"))
        g2 = flat([frag(t, ds) for t, ds in fr2[:SIGK]])
        EP += g2
        e(scmp("s_cmp_lg_u32", k2.sStage, 0)); e(branch("s_cbranch_scc1", L("epi3")))
        e(wait(vm=0)); e(barrier())
        if not ld: EP += k2.signal(L("sig1"), 1)
        e(salu("s_mov_b32", k2.sStage, 1))
        e(label(L("epi3")))
        if OPT.get("jst"): EP += ST()
        rest = fr2[SIGK:]
        npf = -(-len(hold_pf) // (len(rest) - PK))
        for i, (t, ds) in enumerate(rest):
            if i == len(rest) - PK: e(k2.poll_load())
            EP += flat(hold_pf[:npf]); del hold_pf[:npf]
            EP += frag(t, ds)
        assert not hold_pf
        EP += check("ck2")
        EP += ST()
        e(wait(vm=0)); e(branch("s_branch", "L1_done"))
        FB = [label(L("fb"))]
        e = FB.append
        e(wait(vm=0, lgkm=0))
        e(salu("s_mov_b32", sFB, 1))
        e(valu("v_xor_b32", vKd2, 0x1080, vKd))
        sBuf = sXld
        e(salu("s_lshl_b32", sBuf, sW, 13)); e(salu("s_add_u32", sBuf, sBuf, 128 * KB))
        e(salu("s_sub_u32", sT[0], sBuf, sWld))
        for ds in range(4): e(valu("v_add_u32", vKr[ds], sT[0], vKr[ds]))
        e(salu("s_sub_u32", sT[0], sT[0], 32 * KB))
        for dt in range(8): e(valu("v_add_u32", vVr[dt], sT[0], vVr[dt]))
        def fb_load(w): return flat(kv_groups(dma_kv(w, sBuf, 0))) + [wait(vm=0)]
        for t in range(NT): e(valu("v_mov_b32", Lr(t), "0xff800000"))
        e(salu("s_mov_b32", sKoff, 0))
        F1 = [label(L("fb1"))] + fb_load("K") + [read_k(f, vKr, 0) for f in range(8)] + [wait(lgkm=0)]
        for t in range(NT):
            F1 += qk_block(t, t & 1, cinit=False) + [nop(8)]
            for k in range(4): F1.append(valu("v_max3_f32", Lr(t), Lr(t), SB[t & 1][2 * k], SB[t & 1][2 * k + 1]))
        F1 += [salu("s_add_u32", sKoff, sKoff, 8192), scmp("s_cmp_lt_u32", sKoff, 262144), branch("s_cbranch_scc1", L("fb1"))]
        F2 = xgroup_reduce("v_max_f32", [Lr(t) for t in range(NT)], [Tm(t) for t in range(NT)])
        for t in range(NT):
            for k in range(4): F2.append(valu("v_sub_f32", Cm(t)[k], 0, Lr(t)))
        for t in range(NT): F2.append(valu("v_mov_b32", Lr(t), 0))
        for r in range(192): F2.append(valu("v_accvgpr_write_b32", A(r), 0))
        if NT > 6:
            for dt in range(8):
                for k in range(4): F2.append(valu("v_mov_b32", O6(dt)[k], 0))
        F2.append(salu("s_mov_b32", sKoff, 0))
        F3 = [label(L("fb2"))] + fb_load("K") + [read_k(f, vKr, 0) for f in range(8)] + [wait(lgkm=0)]
        F3 += fb_load("V") + [read_v(dt, kt, vVr, 0) for dt in range(8) for kt in range(2)] + [wait(lgkm=0)]
        for t in range(NT):
            sb = t & 1
            F3 += qk_block(t, sb) + [nop(8)] + [E(sb, i) for i in range(8)] + [nop(1)] + [AD(t, sb, i) for i in range(8)] + [CV(sb, k) for k in range(4)] + [nop(2)] + pv_block(t, sb)
        F3 += [salu("s_add_u32", sKoff, sKoff, 8192), scmp("s_cmp_lt_u32", sKoff, 262144), branch("s_cbranch_scc1", L("fb2"))]
        F4 = [nop(8), branch("s_branch", L("epi"))]
        body = AL + ALa + ALb
        trace = P + QLt + QT + T + A0 + body + body + AL + ALa[:cut] + TL + EP + FB + F1 + F1 + F2 + F3 + F3 + F4 + EP
        prog = P + QL + QT + T + A0 + body + TL + EP + FB + F1 + F2 + F3 + F4
        return trace, prog

def touch_wo_setup():
    o = []
    e = o.append
    srd = SRD_W
    e(salu("s_mov_b32", srd[0], "s92")); e(salu("s_mov_b32", srd[1], "s93")); e(salu("s_mov_b32", srd[2], 8388608)); e(salu("s_mov_b32", srd[3], 0x20000))
    e(salu("s_lshl_b32", sXoff, "s2", 15)); e(salu("s_lshl_b32", sT[1], sHH, 14)); e(salu("s_add_u32", sXoff, sXoff, sT[1]))
    e(salu("s_add_u32", sWoff, sXoff, 8192))
    return o

def code_touch():
    o = []
    e = o.append
    srd = SRD_W
    e(raw("s_getpc_b64 s[56:57]", "salu", wr=[sTmp2]))
    e(raw("L1_pc:", "label"))
    e(raw(f"s_sub_u32 {srd[0]}, s56, L1_pc-attn_kernel", "salu", rd=[sTmp2], wr=[srd[0], "scc"]))
    e(raw(f"s_subb_u32 {srd[1]}, s57, 0", "salu", rd=[sTmp2], wr=[srd[1], "scc"]))
    e(raw(f"s_mov_b32 {srd[2]}, L_code_end-attn_kernel", "salu", wr=[srd[2]])); e(salu("s_mov_b32", srd[3], 0x20000))
    e(salu("s_lshr_b32", sT[0], "s2", 3)); e(salu("s_lshl_b32", sT[0], sT[0], 1)); e(salu("s_add_u32", sT[0], sT[0], sHH)); e(salu("s_lshl_b32", sT[0], sT[0], 11))
    e(raw("s_mov_b64 exec, 0xffff", "salu"))
    e(bload(vKd2, vWd, srd, sT[0]))
    e(raw("s_mov_b64 exec, -1", "salu"))
    return o

def common_addr():
    P = []
    e = P.append
    vRho = vT2
    e(valu("v_lshrrev_b32", vT0, 4, vLane))
    e(valu("v_and_b32", vRho, 15, vLane))
    e(valu("v_and_b32", vT1, 6, vRho)); e(valu("v_xor_b32", vT1, vT1, vT0)); e(valu("v_lshlrev_b32", vXr[0], 4, vT1))
    e(valu("v_and_b32", vT1, 7, vRho)); e(valu("v_lshl_add_u32", vXr[0], vT1, 7, vXr[0]))
    e(valu("v_lshrrev_b32", vT1, 3, vRho)); e(valu("v_lshl_add_u32", vXr[0], vT1, 15, vXr[0]))
    e(salu("s_lshl_b32", sT[0], sHALF, 16)); e(valu("v_add_u32", vXr[0], sT[0], vXr[0]))
    e(valu("v_xor_b32", vXr[1], 64, vXr[0]))
    e(valu("v_lshlrev_b32", vWr[0], 4, vRho)); e(valu("v_lshrrev_b32", vT1, 2, vRho)); e(valu("v_lshl_add_u32", vWr[0], vT1, 8, vWr[0]))
    e(valu("v_lshl_add_u32", vWr[0], vT0, 11, vWr[0]))
    e(valu("v_add_u32", vWr[0], sWld, vWr[0]))
    for ds in range(1, 4): e(valu("v_xor_b32", vWr[ds], ds * 64, vWr[0]))
    def kappa(dst, rho, tmp):
        e(valu("v_and_b32", dst, 3, rho)); e(valu("v_lshrrev_b32", tmp, 3, rho)); e(valu("v_lshl_add_u32", dst, tmp, 2, dst))
        e(valu("v_and_b32", tmp, 4, rho)); e(valu("v_lshl_add_u32", dst, tmp, 2, dst))
    kappa(vKr[0], vRho, vT1)
    e(valu("v_lshlrev_b32", vKr[0], 8, vKr[0]))
    e(valu("v_and_b32", vT1, 7, vRho)); e(valu("v_lshlrev_b32", vT1, 1, vT1)); e(valu("v_xor_b32", vT1, vT1, vT0))
    e(valu("v_lshl_add_u32", vKr[0], vT1, 4, vKr[0])); e(valu("v_add_u32", vKr[0], sWld, vKr[0]))
    for ds in range(1, 4): e(valu("v_xor_b32", vKr[ds], ds * 64, vKr[0]))
    e(salu("s_sub_u32", sT[2], sSPld, sWld))
    for ds in range(4): e(valu("v_add_u32", vKs[ds], sT[2], vKr[ds]))
    e(valu("v_lshrrev_b32", vRho, 2, vLane))
    kappa(vVr[0], vRho, vT1)
    e(valu("v_lshlrev_b32", vVr[0], 8, vVr[0]))
    e(valu("v_and_b32", vT1, 7, vRho)); e(valu("v_lshl_add_u32", vVr[0], vT1, 5, vVr[0]))
    e(valu("v_and_b32", vT1, 3, vLane)); e(valu("v_lshl_add_u32", vVr[0], vT1, 3, vVr[0]))
    e(salu("s_add_u32", sT[1], sWld, 32 * KB)); e(valu("v_add_u32", vVr[0], sT[1], vVr[0]))
    for dt in range(1, 8): e(valu("v_xor_b32", vVr[dt], dt * 32, vVr[0]))
    e(valu("v_lshlrev_b32", vOst, 4, vLane))
    e(salu("s_lshr_b32", sOoff, sHEAD, 3)); e(salu("s_lshl_b32", sOoff, sOoff, 4)); e(salu("s_and_b32", sT[0], sHEAD, 7)); e(salu("s_add_u32", sOoff, sOoff, sT[0]))
    e(salu("s_mul_i32", sOoff, sOoff, 26 * KB)); e(salu("s_mul_i32", sT[0], sHALF, 7 * KB)); e(salu("s_add_u32", sOoff, sOoff, sT[0]))
    e(salu("s_mov_b32", sScale[0], f32(QSCALE))); e(salu("s_mov_b32", sScale[1], f32(QSCALE)))
    e(salu("s_mov_b32", sFB, 0)); e(salu("s_mov_b32", sCnt, 0))
    return P

def build(name, stamp=False, fused=False):
    ST = Stamps(stamp)
    P = []
    e = P.append
    e(scmp("s_cmp_ge_u32", "s2", 256)); e(branch("s_cbranch_scc1", "L1_end"))
    P += ST()
    e(raw("s_load_dwordx8 s[28:35], s[0:1], 0", "smem"))
    e(raw("s_load_dwordx8 s[92:99], s[0:1], 32", "smem"))
    e(valu("v_lshrrev_b32", vT0, 6, "v0")); e(valu("v_and_b32", vLane, 63, "v0"))
    e(raw(f"v_readfirstlane_b32 {sW}, {vT0}", "valu", rd=[vT0], wr=[sW]))
    e(salu("s_and_b32", sT[0], "s2", 7)); e(salu("s_lshr_b32", sT[1], "s2", 3))
    e(salu("s_and_b32", sB, sT[0], 1)); e(salu("s_lshl_b32", sB, sB, 3)); e(salu("s_and_b32", sT[2], sT[1], 7)); e(salu("s_add_u32", sB, sB, sT[2]))
    e(salu("s_lshr_b32", sHEAD, sT[0], 1)); e(salu("s_lshl_b32", sHEAD, sHEAD, 2)); e(salu("s_lshr_b32", sT[2], sT[1], 3)); e(salu("s_add_u32", sHEAD, sHEAD, sT[2]))
    e(salu("s_lshr_b32", sHH, sW, 1)); e(salu("s_and_b32", sHALF, sW, 1))
    e(salu("s_lshl_b32", sHEAD, sHEAD, 1)); e(salu("s_add_u32", sHEAD, sHEAD, sHH))
    e(salu("s_lshl_b32", sXld, sHH, 15))
    e(salu("s_lshl_b32", sWld, sHH, 16))
    e(salu("s_lshl_b32", sSPld, sHH, 14)); e(salu("s_add_u32", sSPld, sSPld, 128 * KB))
    e(valu("v_lshrrev_b32", vT0, 3, vLane)); e(valu("v_and_b32", vT1, 6, vT0)); e(valu("v_and_b32", vXd, 7, vLane))
    e(valu("v_xor_b32", vXd, vXd, vT1)); e(valu("v_lshlrev_b32", vXd, 4, vXd)); e(valu("v_lshl_add_u32", vXd, vT0, 11, vXd))
    e(salu("s_lshl_b32", sT[1], sHH, 14))
    e(valu("v_add_u32", vXd, sT[1], vXd))
    e(valu("v_lshrrev_b32", vT0, 4, vLane)); e(valu("v_lshlrev_b32", vT1, 2, vT0)); e(valu("v_and_b32", vWd, 15, vLane))
    e(valu("v_xor_b32", vWd, vWd, vT1)); e(valu("v_lshlrev_b32", vWd, 4, vWd)); e(valu("v_lshl_add_u32", vWd, vT0, 13, vWd))
    e(valu("v_lshlrev_b32", vT1, 1, vT0)); e(valu("v_and_b32", vKd, 15, vLane)); e(valu("v_xor_b32", vKd, vKd, vT1))
    e(valu("v_lshlrev_b32", vKd, 4, vKd)); e(valu("v_lshl_add_u32", vKd, vT0, 8, vKd))
    e(valu("v_xor_b32", vKd2, 0x1080, vKd))
    e(salu("s_mov_b32", sXoff, 0)); e(salu("s_mov_b32", sWoff, 0)); e(salu("s_mov_b32", sKlin, 0))
    e(salu("s_lshr_b32", sRot, "s2", 3)); e(salu("s_lshl_b32", sT[0], "s2", 2)); e(salu("s_add_u32", sRot, sRot, sT[0]))
    e(salu("s_lshl_b32", sT[0], sHH, 4)); e(salu("s_add_u32", sRot, sRot, sT[0])); e(salu("s_and_b32", sRot, sRot, 31)); e(salu("s_lshl_b32", sRot, sRot, 13))
    e(salu("s_mov_b32", sKoff, sRot))
    e(raw("s_waitcnt lgkmcnt(0)", "other"))
    if OPT.get("pstamp"): P += ST()
    e(salu("s_mul_i32", sT[0], sB, 425984))
    e(salu("s_add_u32", SRD_X[0], "s28", sT[0])); e(salu("s_addc_u32", SRD_X[1], "s29", 0)); e(salu("s_mov_b32", SRD_X[2], 425984)); e(salu("s_mov_b32", SRD_X[3], 0x20000))
    e(salu("s_lshl_b32", sT[0], sHEAD, 8))
    e(salu("s_add_u32", SRD_W[0], "s34", sT[0])); e(salu("s_addc_u32", SRD_W[1], "s35", 0)); e(salu("s_sub_u32", SRD_W[2], 8388608, sT[0])); e(salu("s_mov_b32", SRD_W[3], 0x20000))
    e(salu("s_lshl_b32", sT[0], sB, 5)); e(salu("s_add_u32", sT[0], sT[0], sHEAD)); e(salu("s_lshl_b32", sT[0], sT[0], 18))
    e(salu("s_add_u32", SRD_K[0], "s30", sT[0])); e(salu("s_addc_u32", SRD_K[1], "s31", 0)); e(salu("s_mov_b32", SRD_K[2], 262144)); e(salu("s_mov_b32", SRD_K[3], 0x20000))
    e(salu("s_add_u32", SRD_V[0], "s32", sT[0])); e(salu("s_addc_u32", SRD_V[1], "s33", 0)); e(salu("s_mov_b32", SRD_V[2], 262144)); e(salu("s_mov_b32", SRD_V[3], 0x20000))
    e(salu("s_lshl_b32", sT[0], sB, 21))
    e(salu("s_add_u32", SRD_O[0], "s98", sT[0])); e(salu("s_addc_u32", SRD_O[1], "s99", 0)); e(salu("s_mov_b32", SRD_O[2], k2.OSTRIDE)); e(salu("s_mov_b32", SRD_O[3], 0x20000))
    e(scmp("s_cmp_eq_u32", sHALF, 0)); e(branch("s_cbranch_scc1", "L1a_start"))
    k0 = ST.k
    progs = []
    for NT, loader, tag in ((6, True, "b"), (7, False, "a")):
        ST.k = k0
        trace, prog = Role(NT, loader, tag, ST).build()
        trace = P + trace
        for _ in range(5):
            if auto_lgkm(trace) == 0: break
        else: raise RuntimeError("lgkm not stable")
        probs = check_hazards(expand(trace), name + tag)
        for p in probs: print(p)
        assert not probs
        progs.append(prog)
    END = [label("L1_end"), raw("s_endpgm")]
    return text(expand(P + progs[0] + progs[1] + END)) + k2.build_fused(ST) + "L_code_end:\n"

if __name__ == "__main__":
    s = build("k1")
    print(len(s.splitlines()), "lines")
```

```python
from fw import *
import struct, os
import k2
OPT = dict(kv.split('=') for kv in os.environ.get('K1OPT', '').split(',') if kv)
def f32(x): return "0x%08x" % struct.unpack("<I", struct.pack("<f", x))[0]
KB = 1024
QSCALE = 1.4426950408889634 * (128 ** -0.5)

sW, sHH, sHALF, sB, sHEAD = S(3), S(4), S(5), S(6), S(7)
SRD_X, SRD_W, SRD_K, SRD_V, SRD_O = S(8, 4), S(12, 4), S(16, 4), S(20, 4), S(24, 4)
sRot = S(39)
sXld, sWld, sSPld = S(40), S(41), S(42)
sXoff, sWoff, sKoff = S(43), S(44), S(45)
sT = [S(46), S(47), S(48), S(49)]
sCnt, sFB = S(50), S(51)
sScale = S(52, 2)
sOoff, sKlin = S(54), S(55)
sTmp2 = S(56, 2)
def kadv(): return [salu('s_add_u32', sKlin, sKlin, 8192), salu('s_xor_b32', sKoff, sKlin, sRot)]

vLane, vT0, vT1, vT2 = V(1), V(2), V(3), V(29)
vXd, vWd, vKd, vKd2 = V(4), V(5), V(6), V(31)
vXr = [V(7), V(8)]
vWr = [V(9 + i) for i in range(4)]
vKr = [V(13 + i) for i in range(4)]
vVr = [V(17 + i) for i in range(7)] + [V(28)]
vKs = [V(24 + i) for i in range(4)]
vOst = V(30)
ACC0 = 32
def acc(t, f): return V(ACC0 + t * 32 + f * 4, 4)
def Qf(t, ds): return V(ACC0 + t * 32 + ds * 4, 4)
def fr(t, o, n): return V(ACC0 + t * 32 + 16 + o, n)
def Cm(t): return fr(t, 0, 4)
def Lr(t): return fr(t, 4, 1)
def Tm(t): return fr(t, 5, 1)
def Tm2(t): return fr(t, 6, 2)
SB = [fr(0, 8, 8), fr(1, 8, 8)]
PB = [fr(2, 8, 4), fr(2, 12, 4)]
def O6(dt): return fr(3 + (dt >> 1), 8 + 4 * (dt & 1), 4)
def Oacc(t, dt): return A(t * 32 + dt * 4, 4) if t < 6 else O6(dt)
QB = int(OPT.get('qb', '0'))
vXr6 = [V(224), V(225)]
def Kf(f): return A(192 + 4 * f, 4)
def Vf(dt): return A(224 + 4 * dt, 4)
def Wset(p, f): return A(112 + 32 * p + 4 * f, 4)
def Xset(p, t): return A(28 * p + 4 * t, 4)

def inter(mf, gaps):
    out = []
    assert all(0 <= k < len(mf) for k in gaps), (sorted(gaps), len(mf))
    order = lambda i: 0 if i.kind in ("salu", "wait", "barrier", "branch", "label", "smem", "nop") else (1 if i.kind in ("lds_r", "lds_w", "dma", "vmem_l", "vmem_s") else 2)
    for k, m in enumerate(mf):
        out.append(m)
        out.extend(sorted(gaps.get(k, []), key=order))
    return out
flat = lambda gs: [o for g in gs for o in g]

def wchunk(s): return (1 + 4 * (s & 1) + 2 * ((s >> 1) & 1)) * 8 * KB

def dma_w(s):
    g = []
    for p in range(8):
        ops = []
        if p % 4 == 0: ops.append(salu("s_add_u32", "m0", sWld, wchunk(s) + (p >> 2) * 4096))
        ops.append(salu("s_add_u32", sT[p & 1], sWoff, p * 32768 - (p & 3) * KB))
        ops.append(dma(vWd, SRD_W, sT[p & 1], (p & 3) * KB))
        g.append(ops)
    g[-1] = g[-1] + [salu("s_add_u32", sWoff, sWoff, 262144)]
    return g
def dma_x(par, lo, hi):
    g = []
    for T in range(lo, hi):
        fh, t = (0, T) if T < 7 else (1, T - 7)
        ops = [salu("s_add_u32", "m0", sXld, fh * 64 * KB + par * 16 * KB + t * KB), salu("s_add_u32", sT[T & 1], sXoff, T * 32768),
               dma(vXd, SRD_X, sT[T & 1], 0)]
        g.append(ops)
    if hi == 13: g[-1] = g[-1] + [salu("s_add_u32", sXoff, sXoff, 128)]
    return g
KVF = OPT.get("kvflag", "nt").replace("none", "")
def dma_kv(which, base, off):
    srd = SRD_K if which == "K" else SRD_V
    g = []
    for p in range(8):
        pre = [salu("s_add_u32", "m0", base, off + (p >> 2) * 4096)] if p % 4 == 0 else []
        g.append((pre, dma(vKd if p < 4 else vKd2, srd, sKoff, (p & 3) * KB, KVF)))
    return g
DEPTH = int(OPT.get("depth", "7"))
if DEPTH > 60: DEPTH = None
LEAD = int(OPT.get("lead", "3"))
DFRAC = int(OPT.get("dfrac", "0"))
def kv_groups(g, depth=None): return [pre + ([wait(vm=depth)] if depth is not None else []) + ([nop(1)] if pre and depth is None else []) + [d] for pre, d in g]

def reads_w(s):
    r = []
    for f in range(8):
        ds, T = f >> 1, f & 1
        for a in range(2):
            r.append(ds_r("ds_read_b64_tr_b16", Wset(s & 1, f)[2 * a:2 * a + 2], vWr[ds], wchunk(s) + a * KB + 8 * T))
    return r
def read_k(f, addr, off): return ds_r("ds_read_b128", Kf(f), addr[f & 3], off + (f >> 2) * 2048)
def read_v(dt, kt, addr, off): return ds_r("ds_read_b64_tr_b16", Vf(dt)[2 * kt:2 * kt + 2], addr[dt], off + kt * 2048)

def qk_block(t, sb, cinit=True):
    mf = []
    for kt in range(2):
        D = SB[sb][4 * kt:4 * kt + 4]
        for ds in range(4):
            mf.append(mfma16(D, Kf(4 * kt + ds), Qf(t, ds), (Cm(t) if cinit else 0) if ds == 0 else D))
    return mf
def pv_block(t, sb, first=False):
    return [mfma16(Oacc(t, dt), Vf(dt), PB[sb], 0 if first else Oacc(t, dt)) for dt in range(8)]
def E(sb, i): return valu("v_exp_f32", SB[sb][i], SB[sb][i])
def AD(t, sb, i): return valu("v_add_f32", Lr(t), Lr(t), SB[sb][i])
def CV(sb, k): return valu("v_cvt_pk_bf16_f32", PB[sb][k], SB[sb][2 * k], SB[sb][2 * k + 1])
def sm_half(t, sb, h):
    o = 4 * h
    return {0: [AD(t, sb, o)], 1: [E(sb, o + 1)], 2: [AD(t, sb, o + 1), CV(sb, 2 * h)], 3: [E(sb, o + 2)],
            4: [AD(t, sb, o + 2)], 5: [E(sb, o + 3)], 6: [AD(t, sb, o + 3), CV(sb, 2 * h + 1)]}

def xgroup_reduce(op, regs, tmps):
    o = []
    for sw in ("v_permlane16_swap_b32", "v_permlane32_swap_b32"):
        for r, t in zip(regs, tmps): o.append(valu("v_mov_b32", t, r))
        o.append(nop(2))
        for r, t in zip(regs, tmps): o.append(permswap(sw, r, t))
        o.append(nop(1))
        for r, t in zip(regs, tmps): o.append(valu(op, r, r, t))
    return o

class Role:
    def __init__(self, NT, loader, tag, ST):
        self.NT, self.loader, self.tag, self.ST = NT, loader, tag, ST
    def L(self, n): return f"L1{self.tag}_{n}"
    def tf(self):
        l = [(t, f) for t in range(6) for f in range(8)]
        return l + [(6, f) for f in (range(8 - 2 * QB, 8) if self.loader else range(8 - 2 * QB))]
    def reads_x(self, a):
        r = [ds_r("ds_read_b128", Xset((a & 1) * 2 + sp, t), vXr[sp], (a & 1) * 16 * KB + t * KB) for sp in range(2) for t in range(self.NT)]
        if self.loader and QB: r += [ds_r("ds_read_b128", Xset((a & 1) * 2 + sp, 6), vXr6[sp], (a & 1) * 16 * KB + 6 * KB) for sp in range(2)]
        return r
    def kstep(self, s, vm, reads, dmas, extra=None, vma=None, late=None):
        NT = self.NT
        a = s >> 1
        mf = [mfma16(acc(t, f), Wset(s & 1, f), Xset((a & 1) * 2 + (s & 1), t), acc(t, f)) for t, f in self.tf()]
        gaps = {}
        n = len(mf)
        for k, ops in (extra or {}).items(): gaps.setdefault(k, []).extend(ops)
        isS = lambda o: o.kind in ("salu", "wait", "nop")
        nS = lambda g: sum(1 for o in gaps.get(g, []) if isS(o))
        nU = lambda g: sum(1 for o in gaps.get(g, []) if not isS(o))
        if self.loader and dmas:
            real = [g for g in dmas if any(not isS(o) for o in g)]
            pos = [2 + i * (n - 5) // len(real) for i in range(len(real))]
            assert len(set(pos)) == len(pos)
            k = -1; last = 0
            for g in dmas:
                mem = [i for i, o in enumerate(g) if not isS(o)]
                if mem:
                    k += 1; q = pos[k]
                    pre, post = g[:mem[0]], g[mem[0] + 1:]
                    pre = [o for o in pre if o.kind != "nop"]
                    if len(pre) == 1 and "m0" in pre[0].wr: gaps.setdefault(q - 1, []).append(pre[0])
                    else:
                        for i, o in enumerate(pre): gaps.setdefault(max(last + 1, q - (len(pre) - 1 - i)), []).append(o)
                    gaps.setdefault(q, []).append(g[mem[0]])
                    for o in post: gaps.setdefault(q + 1, []).append(o)
                    last = q
                else:
                    for o in g: gaps.setdefault(last + 1, []).append(o)
        free = [g for g in range(n - 8) if nU(g) == 0]
        for i, r in enumerate(reads): gaps.setdefault(free[i * len(free) // len(reads)], []).append(r)
        for k, ops in (late or {}).items(): gaps.setdefault(k, []).extend(ops)
        head = [wait(vm=vm if self.loader else vma, lgkm=0)] + ([] if OPT.get("noqbar") else [barrier()])
        return head + inter(mf, gaps)
    def period(self, j, first=False, exit_label=None, wot=False):
        NT = self.NT
        out = []
        slot_cur = (j - 1) & 3
        slot_nxt = j & 3
        H = 2 * NT
        dm = []
        dmpos = {}
        advpos = None
        if LEAD == 4:
            if self.loader and not first:
                dm = dma_kv("K", sWld, slot_cur * 8 * KB) + dma_kv("V", sWld, 32 * KB + slot_cur * 8 * KB)
                slots = [(hs, g) for hs in range(2, H) for g in (3, 7)][:-1]
                advpos = (H - 1, 5)
        elif self.loader:
            dm = dma_kv("V", sWld, 32 * KB + ((j + 2) & 3) * 8 * KB) + dma_kv("K", sWld, slot_cur * 8 * KB)
            slots = [(hs, g) for hs in range(H) for g in (3, 7)]
        for i, x in enumerate(dm):
            if OPT.get("emu15") and i == 15: continue
            hs, g = slots[i * len(slots) // len(dm)]
            dmpos.setdefault(hs, []).append((g, x))
            if LEAD != 4 and i == 8:
                assert g == 3 and slots[7 * len(slots) // len(dm)] <= (hs - 1, 3) and hs >= 2
                advpos = (hs - 1, 5)
        for hs in range(H):
            t = hs >> 1
            sb = (j * NT + t) & 1
            tn = (t + 1) % NT
            if hs % 2 == 0:
                mf = qk_block(tn, sb ^ 1); gaps = sm_half(t, sb, 1); gaps[7] = [E(sb ^ 1, 0)]
            else:
                mf = pv_block(t, sb, first); gaps = sm_half(tn, sb ^ 1, 0); gaps[7] = [E(sb ^ 1, 4)]
            def add(g, ops): gaps.setdefault(g, []).extend(ops)
            if hs == 0 and not first:
                for g in range(8): add(g, [read_v(4 + (g >> 1), g & 1, vVr, slot_cur * 8 * KB)])
            if hs == H - 1:
                for g in range(8): add(g, [read_v(g >> 1, g & 1, vVr, slot_nxt * 8 * KB)])
            if hs in (H - 4, H - 3):
                for q in range(4): add(2 * q, [read_k(4 * (hs - (H - 4)) + q, vKr, slot_nxt * 8 * KB)])
            if hs == 1:
                add(7, ([wait(vm=(48 if first else 32) if LEAD == 4 else 16)] if self.loader else ([wait(vm=0)] if first else [])) + [barrier()])
            if dm:
                for gi, (pre, d) in dmpos.get(hs, []):
                    add(gi - 2, pre)
                    if DEPTH is not None:
                        self.dcnt = getattr(self, "dcnt", 0) + 1
                        add(gi - 1, [wait(vm=DEPTH + (1 if (self.dcnt * DFRAC) % 4 < DFRAC else 0))])
                    add(gi, [d])
            if wot and hs in wot:
                it, srd, voff, off = wot[hs]
                pre = [salu("s_add_u32", sT[1], off[0], off[1])] if isinstance(off, tuple) else [salu("s_mov_b32", sT[1], off)]
                add(0, pre); add(4, [scmp("s_cmp_eq_u32", sCnt, it), salu("s_cselect_b32", sT[0], sT[1], 0x1000000), bload(vT2, voff, srd, sT[0])])
            if advpos and hs == advpos[0]: add(advpos[1], kadv()[:1]); add(advpos[1] + 1, kadv()[1:])
            if exit_label and hs == H - 3:
                add(7, [scmp("s_cmp_eq_u32", sCnt, 7)])
            out += inter(mf, gaps)
            if exit_label and hs == H - 3:
                out.append(branch("s_cbranch_scc1", exit_label))
        return out

    def build(self):
        NT, ST, L = self.NT, self.ST, self.L
        ld = self.loader
        P = [label(L("start"))]
        e = P.append
        if ld:
            P += flat(dma_w(0)) + flat(dma_x(0, 0, 13)) + flat(dma_w(1))
        P += common_addr()
        for t, f in self.tf():
            for k in range(4): e(valu("v_mov_b32", acc(t, f)[k], 0))
        if ld and QB:
            for sp in range(2): e(valu("v_subrev_u32", vXr6[sp], 64 * KB, vXr[sp]))
        NM = len(self.tf())
        if ld:
            e(salu("s_add_u32", sXoff, sXoff, 128)); e(salu("s_add_u32", sWoff, sWoff, 262144))
            P += kadv()
            e(wait(vm=8))
        else:
            e(salu("s_mov_b32", sXoff, 128)); e(salu("s_mov_b32", sWoff, 2 * 262144))
            P += flat(dma_x(1, 0, 13)) + flat(dma_w(2))
        e(barrier())
        P += ST()
        P += reads_w(0) + self.reads_x(0)
        if ld:
            P += flat(dma_w(3)) + [wait(vm=8)]
        else:
            for k in range(4): e(salu("s_mov_b32", SRD_X[k], SRD_K[k] if k < 3 else 0x20000))
            e(salu("s_mov_b32", sXld, sSPld))
            e(valu("v_mov_b32", vXd, vKd))
            e(valu("v_lshlrev_b32", vWd, 7, vLane))
            if OPT.get("codepf", "1") == "1": P += code_touch()
            P += k2.flag_addr(sT[0], sB, sHEAD, sT[1])
            P += [scmp("s_cmp_lg_u32", sW, 0), branch("s_cbranch_scc1", L("norst")), valu("v_mov_b32", vT0, sT[0]), valu("v_mov_b32", vT1, 0), raw("s_mov_b64 exec, 1", "salu"),
                  raw(f"global_store_dword {vT0}, {vT1}, s[98:99] sc1", "vmem_s", rd=[vT0, vT1]), raw("s_mov_b64 exec, -1", "salu"), label(L("norst"))]
        def qloop(name, last, bg):
            QL = [label(L(name))]
            for s in range(4):
                reads = reads_w(s + 1) + (self.reads_x((s + 1) >> 1) if s & 1 else [])
                dmas = (dma_x(s >> 1, 0, 7) if s % 2 == 0 else dma_x(s >> 1, 7, 13)) + dma_w(s)
                extra = bg(s) if not ld else {}
                if s == 3: extra.update({NM - 2: [salu("s_add_u32", sCnt, sCnt, 1)], NM - 1: [scmp("s_cmp_lt_u32", sCnt, last)]})
                QL += self.kstep(s, 29 if s % 2 == 0 else 23, reads, dmas, extra, vma=1 if (s == 1 and name == "qloopA") else None)
            QL.append(branch("s_cbranch_scc1", L(name)))
            return QL
        def bgA(s):
            x = {3: [dma(vXd, SRD_X, sKoff, s * KB, KVF)]}
            if s == 0: x[1] = [salu("s_mov_b32", "m0", sXld)]
            if s == 3:
                x[5] = [salu("s_add_u32", sXld, sXld, 4096), valu("v_xor_b32", vXd, 0x1080, vXd)]
                x[7] = [scmp("s_cmp_eq_u32", sCnt, 1)]
                x[8] = [salu("s_cselect_b32", SRD_X[0], SRD_V[0], SRD_X[0])]
                x[9] = [salu("s_cselect_b32", SRD_X[1], SRD_V[1], SRD_X[1])]
            return x
        def touch(w): return bload(vKd2, vWd, SRD_K if w == "K" else SRD_V, sKoff, 0, OPT.get("pfflag", ""))
        NPF = int(OPT.get("npf", "0"))
        sCp, sCq = sXoff, sWoff
        def bgB(s):
            if s % 2: return {}
            p = s >> 1
            x = {2: [wait(vm=2)], 3: [salu("s_add_u32", sT[0], sCq, p * 8192), bstore(Kf(p), vXd, SRD_X, sT[0], 0, "sc1")],
                 7: [salu("s_add_u32", sT[0], sCp, p * 8192), bload(Kf(p), vXd, SRD_W, sT[0], 256)]}
            if s == 2:
                x[9] = [salu("s_mov_b32", sCq, sCp)]; x[10] = [salu("s_add_u32", sCp, sCp, 16384)]
                x[11] = [scmp("s_cmp_eq_u32", sCnt, 5), salu("s_cselect_b32", sCp, 0x1000000, sCp)]
            return x
        def bgT(s):
            if NPF < 2 or ld: return {}
            if s % 2 == 0: return {1: kadv()[:1], 2: kadv()[1:], 3: [touch("K")]}
            return {3: [touch("V")]}
        if ld:
            QL = qloop("qloop", 7, None)
            QLt = QL + QL
        else:
            LA, LB = qloop("qloopA", 4, bgA), qloop("qloopB", 7, bgB)
            CN = [salu("s_mov_b32", SRD_W[0], "s92"), salu("s_mov_b32", SRD_W[1], "s93"), salu("s_mov_b32", SRD_W[2], 8388608), salu("s_mov_b32", SRD_W[3], 0x20000),
                  salu("s_add_u32", SRD_X[0], "s98", k2.WCOPY), salu("s_addc_u32", SRD_X[1], "s99", 0), salu("s_mov_b32", SRD_X[2], 8388608), salu("s_mov_b32", SRD_X[3], 0x20000),
                  salu("s_lshl_b32", sCp, "s2", 15), salu("s_lshl_b32", sT[0], sHH, 10), salu("s_add_u32", sCp, sCp, sT[0]), salu("s_mov_b32", sCq, 0x1000000),
                  valu("v_lshrrev_b32", vT0, 4, vLane), valu("v_and_b32", vT1, 15, vLane), valu("v_lshlrev_b32", vT1, 4, vT1), valu("v_lshl_add_u32", vXd, vT0, 11, vT1)]
            sIt = sSPld
            CT = [salu("s_lshr_b32", sIt, "s2", 3), salu("s_and_b32", sIt, sIt, 3), salu("s_lshl_b32", sT[0], sW, 4), salu("s_add_u32", sIt, sIt, sT[0])]
            CA = [scmp("s_cmp_lg_u32", sCnt, sIt), branch("s_cbranch_scc1", L("nocnt")),
                  salu("s_lshr_b32", sT[0], sHEAD, 3), salu("s_lshl_b32", sT[1], sB, 2), salu("s_add_u32", sT[0], sT[0], sT[1]), salu("s_lshl_b32", sT[0], sT[0], 2),
                  valu("v_mov_b32", V(0), sT[0]), valu("v_mov_b32", vKd2, 1), raw("s_mov_b64 exec, 1", "salu"),
                  raw(f"global_atomic_add v0, {vKd2}, s[96:97] sc1", "vmem_s", rd=["v0", vKd2]), raw("s_mov_b64 exec, -1", "salu"), label(L("nocnt"))]
            QL = LA + CN + LB
            QLt = LA + LA + CN + LB + LB
        QT = ST()
        kvg = lambda w, off: kv_groups(dma_kv(w, sWld, off), DEPTH + int(OPT.get('qtd', '2')) if DEPTH is not None else None)
        vVs = [V(0), vT0, vT1, vT2] + vKs
        spv = [salu("s_sub_u32", sT[2], sSPld, sWld), salu("s_sub_u32", sT[2], sT[2], 24 * KB)]
        def mrg(a, b):
            for k, v in b.items(): a.setdefault(k, []).extend(v)
            return a
        if LEAD == 4: qd = [kvg("K", 8 * i * KB) + kvg("V", (32 + 8 * i) * KB) + [kadv()] for i in range(4)]; qw = (24, 32)
        else: qd = [kvg("K", 0), kvg("V", 32 * KB) + [kadv()], kvg("K", 8 * KB), kvg("V", 40 * KB) + [kadv()]]; qw = (16, 16)
        QT += self.kstep(0, 29, reads_w(1), qd[0], {}, vma=4)
        QT += self.kstep(1, qw[0], reads_w(2) + self.reads_x(1), qd[1], bgT(1))
        QT += self.kstep(2, qw[1], [read_k(f, vKs, 0) for f in range(8)] + reads_w(3), qd[2],
                         mrg(bgT(2), {30: spv, **{32 + dt: [valu("v_add_u32", vVs[dt], sT[2], vVr[dt])] for dt in range(8)}}))
        TRIM = OPT.get("trim", "1") == "1" and not QB
        x31 = {}
        setup = ([] if ld else CT) + k2.early_setup(sB, sHEAD) + [salu("s_mov_b32", k2.sO16, 0x1000000 if ld else sOoff)]
        if TRIM:
            g = 0; cur = []
            for o in setup:
                glue = o.kind == "salu" and o.text.split()[0] in ("s_addc_u32", "s_cselect_b32")
                full = len(cur) >= 2 or (o.kind == "salu" and any(c.kind != "salu" for c in cur))
                if full and not glue: g += 1; cur = []
                cur.append(o); x31.setdefault(g, []).append(o)
            assert g < 40
            c0 = []
            for ds in range(4):
                src = V(ACC0 + ds * 8, 8)
                c0 += [valu("v_mul_f32", src[k], sScale[0], src[k]) for k in range(8)] + [valu("v_cvt_pk_bf16_f32", Qf(0, ds)[k], src[2 * k], src[2 * k + 1]) for k in range(4)]
            late = {}
            g0 = 14
            for i, o in enumerate(c0): late.setdefault(g0 + i * (NM - g0) // len(c0), []).append(o)
        QT += self.kstep(3, None, [read_v(dt, kt, vVs, 0) for dt in range(8) for kt in range(2)], qd[3], x31, late=late if TRIM else None)
        tk = kvg("K", 16 * KB) if (ld and LEAD != 4) else []
        T = ST()
        e = T.append
        if QB: e(valu("v_lshl_add_u32", vT2, vLane, 4, sSPld))
        if not TRIM: T += setup
        def conv(t, dss=range(4)):
            o = []
            for ds in dss:
                src = V(ACC0 + t * 32 + ds * 8, 8)
                for k in range(4): o.append(valu("v_pk_mul_f32", src[2 * k:2 * k + 2], src[2 * k:2 * k + 2], sScale))
                for k in range(4): o.append(valu("v_cvt_pk_bf16_f32", Qf(t, ds)[k], src[2 * k], src[2 * k + 1]))
            return o
        def prepass(t): return [mfma16(Cm(t), Kf(ds), Qf(t, ds), 0 if ds == 0 else Cm(t)) for ds in range(4)]
        vXf = vT2
        if QB:
            if ld:
                T += conv(6, range(4 - QB, 4))
                for ds in range(4 - QB, 4): e(ds_w("ds_write_b128", vXf, Qf(6, ds), ds * KB))
            else:
                T += conv(6, range(4 - QB))
        for t in range(6 if QB else NT):
            c = conv(t) if (t or not TRIM) else []
            if t:
                pp = prepass(t - 1)
                c = c[:4] + pp + c[4:]
            for _ in range(2 if t < 2 else 1):
                if tk: c = tk.pop(0) + c if _ == 0 else c[:18] + tk.pop(0) + c[18:]
            T += c
            if QB and t == 1:
                T += [wait(lgkm=0), barrier()]
                if not ld:
                    for ds in range(4 - QB, 4): e(ds_r("ds_read_b128", Qf(6, ds), vXf, ds * KB))
            if QB and t == 3 and not ld: T += prepass(6)
        e(nop(2))
        T += prepass(5 if QB else NT - 1)
        for t in range(NT): e(valu("v_mov_b32", Lr(t), 0))
        e(nop(2))
        for t in range(NT): e(valu("v_max3_f32", Cm(t)[0], Cm(t)[0], Cm(t)[1], Cm(t)[2]))
        for t in range(NT): e(valu("v_max_f32", Cm(t)[0], Cm(t)[0], Cm(t)[3]))
        T += xgroup_reduce("v_max_f32", [Cm(t)[0] for t in range(NT)], [Cm(t)[1] for t in range(NT)])
        for k in (3, 2, 1, 0): e(valu("v_sub_f32", Cm(0)[k], 0, Cm(0)[0]))
        e(salu("s_mov_b32", sCnt, 0)); e(nop(1))
        rest = [valu("v_sub_f32", Cm(t)[k], 0, Cm(t)[0]) for t in range(1, NT) for k in (3, 2, 1, 0)]
        T += inter(qk_block(0, 0), {k: rest[3 * k:3 * k + 3] for k in range(8)})
        e(nop(4))
        for i in range(4): e(E(0, i))
        e(E(0, 4))
        for i in range(4): e(AD(0, 0, i))
        e(CV(0, 0)); e(CV(0, 1))
        A0 = ST() + self.period(0, first=True)
        w1 = {} if ld else {2: (7, k2.SRD_W, k2.vTch, (k2.sWarm, 0)), 4: (7, k2.SRD_W, k2.vTch, (k2.sWarm, 65536))}
        AL = [label(L("aloop"))] + self.period(1, wot=w1) + ([] if ld else CA) + self.period(2)
        ALa = self.period(3, exit_label=L("tail"))
        cut = max(i for i, x in enumerate(ALa) if x.kind == "branch") + 1
        ALb = self.period(4) + [salu("s_add_u32", sCnt, sCnt, 1), branch("s_branch", L("aloop"))]
        TL = [label(L("tail"))] + ST()
        sb = (3 * NT + NT - 1) & 1
        g = sm_half(NT - 1, sb, 1)
        for k in (1, 3, 5): TL += g[k]
        TL.append(nop(1))
        for k in (0, 2, 4, 6): TL += g[k]
        TL.append(nop(2))
        TL += pv_block(NT - 1, sb)
        TL += k2.valid_setup()
        TL += [wait(vm=0), barrier()]
        TL += k2.valid_check(L("val"))
        if OPT.get("jst"): TL += ST()
        EP = [label(L("epi"))]
        e = EP.append
        EP += xgroup_reduce("v_add_f32", [Lr(t) for t in range(NT)], [Tm(t) for t in range(NT)])
        vChk, vChl = vT0, vT1
        e(valu("v_mov_b32", vChk, 0)); e(valu("v_mov_b32", vChl, 0))
        for t in range(0, NT - 1, 2): e(valu("v_maximum3_f32", vChl, Lr(t), Lr(t + 1), vChl))
        if NT % 2: e(valu("v_maximum3_f32", vChl, Lr(NT - 1), Lr(NT - 1), vChl))
        for t in range(NT): e(valu("v_rcp_f32", Tm2(t)[0], Lr(t)))
        e(salu("s_mov_b32", sT[1], f32(2.0 ** 28))); e(valu("v_mul_f32", vChk, sT[1], vChl))
        pf = k2.prefetch_groups()
        cnt = [0]
        def frag(t, ds):
            o = []
            n = cnt[0]; cnt[0] += 1
            st = SB[n & 1]; ob = PB[n & 1]
            if t < 6:
                for k in range(8): o.append(valu("v_accvgpr_read_b32", st[k], A(t * 32 + ds * 8 + k)))
                src = st
            else:
                src = V(O6(2 * ds).b, 8)
            if pf and not OPT.get("latepf"): o += pf.pop(0)
            for k in range(4): o.append(valu("v_maximum3_f32", vChk, f"|{src[2*k]}|", f"|{src[2*k+1]}|", vChk))
            for k in range(4): o.append(valu("v_pk_mul_f32", st[2 * k:2 * k + 2], src[2 * k:2 * k + 2], Tm2(t), extra="op_sel_hi:[1,0]"))
            for k in range(4): o.append(valu("v_cvt_pk_bf16_f32", ob[k], st[2 * k], st[2 * k + 1]))
            if ds < 2:
                o.append(salu("s_add_u32", sT[0], sOoff, (((ds >> 1) * 16 + (ds & 1)) * 13 + t) * k2.FU))
                o.append(bstore(ob, vOst, SRD_O, sT[0], 0, "sc1"))
            else:
                for k in range(4): o.append(valu("v_accvgpr_write_b32", k2.Hold((ds - 2) * 7 + t)[k], ob[k]))
            return o
        def check(tag):
            return [salu("s_mov_b32", sT[0], 0x7f800000), raw(f"v_cmp_ngt_f32 vcc, {sT[0]}, {vChk}", "valu", rd=[sT[0], vChk], wr=["vcc"]),
                    scmp("s_cmp_lg_u32", sFB, 0), branch("s_cbranch_scc1", L(tag)), nop(4), branch("s_cbranch_vccnz", L("fb")), label(L(tag))]
        nvm = lambda seq: sum(1 for x in seq if x.kind in ("dma", "vmem_l", "vmem_s"))
        e(scmp("s_cmp_lg_u32", k2.sStage, 0)); e(branch("s_cbranch_scc1", L("epi2")))
        hold_pf = pf[:]; del pf[:]
        for ds in range(2):
            for t in range(NT): EP += frag(t, ds)
        EP += check("ck1")
        if OPT.get("jst"): EP += ST()
        e(label(L("epi2")))
        fr2 = [(t, ds) for ds in (2, 3) for t in range(NT)]
        SIGK = int(OPT.get("sigk", "6")); PK = int(OPT.get("pollk", "1"))
        g2 = flat([frag(t, ds) for t, ds in fr2[:SIGK]])
        EP += g2
        e(scmp("s_cmp_lg_u32", k2.sStage, 0)); e(branch("s_cbranch_scc1", L("epi3")))
        e(wait(vm=0)); e(barrier())
        if not ld: EP += k2.signal(L("sig1"), 1)
        e(salu("s_mov_b32", k2.sStage, 1))
        e(label(L("epi3")))
        if OPT.get("jst"): EP += ST()
        rest = fr2[SIGK:]
        npf = -(-len(hold_pf) // (len(rest) - PK))
        for i, (t, ds) in enumerate(rest):
            if i == len(rest) - PK: e(k2.poll_load())
            EP += flat(hold_pf[:npf]); del hold_pf[:npf]
            EP += frag(t, ds)
        assert not hold_pf
        EP += check("ck2")
        EP += ST()
        e(wait(vm=0)); e(branch("s_branch", "L1_done"))
        FB = [label(L("fb"))]
        e = FB.append
        e(wait(vm=0, lgkm=0))
        e(salu("s_mov_b32", sFB, 1))
        e(valu("v_xor_b32", vKd2, 0x1080, vKd))
        sBuf = sXld
        e(salu("s_lshl_b32", sBuf, sW, 13)); e(salu("s_add_u32", sBuf, sBuf, 128 * KB))
        e(salu("s_sub_u32", sT[0], sBuf, sWld))
        for ds in range(4): e(valu("v_add_u32", vKr[ds], sT[0], vKr[ds]))
        e(salu("s_sub_u32", sT[0], sT[0], 32 * KB))
        for dt in range(8): e(valu("v_add_u32", vVr[dt], sT[0], vVr[dt]))
        def fb_load(w): return flat(kv_groups(dma_kv(w, sBuf, 0))) + [wait(vm=0)]
        for t in range(NT): e(valu("v_mov_b32", Lr(t), "0xff800000"))
        e(salu("s_mov_b32", sKoff, 0))
        F1 = [label(L("fb1"))] + fb_load("K") + [read_k(f, vKr, 0) for f in range(8)] + [wait(lgkm=0)]
        for t in range(NT):
            F1 += qk_block(t, t & 1, cinit=False) + [nop(8)]
            for k in range(4): F1.append(valu("v_max3_f32", Lr(t), Lr(t), SB[t & 1][2 * k], SB[t & 1][2 * k + 1]))
        F1 += [salu("s_add_u32", sKoff, sKoff, 8192), scmp("s_cmp_lt_u32", sKoff, 262144), branch("s_cbranch_scc1", L("fb1"))]
        F2 = xgroup_reduce("v_max_f32", [Lr(t) for t in range(NT)], [Tm(t) for t in range(NT)])
        for t in range(NT):
            for k in range(4): F2.append(valu("v_sub_f32", Cm(t)[k], 0, Lr(t)))
        for t in range(NT): F2.append(valu("v_mov_b32", Lr(t), 0))
        for r in range(192): F2.append(valu("v_accvgpr_write_b32", A(r), 0))
        if NT > 6:
            for dt in range(8):
                for k in range(4): F2.append(valu("v_mov_b32", O6(dt)[k], 0))
        F2.append(salu("s_mov_b32", sKoff, 0))
        F3 = [label(L("fb2"))] + fb_load("K") + [read_k(f, vKr, 0) for f in range(8)] + [wait(lgkm=0)]
        F3 += fb_load("V") + [read_v(dt, kt, vVr, 0) for dt in range(8) for kt in range(2)] + [wait(lgkm=0)]
        for t in range(NT):
            sb = t & 1
            F3 += qk_block(t, sb) + [nop(8)] + [E(sb, i) for i in range(8)] + [nop(1)] + [AD(t, sb, i) for i in range(8)] + [CV(sb, k) for k in range(4)] + [nop(2)] + pv_block(t, sb)
        F3 += [salu("s_add_u32", sKoff, sKoff, 8192), scmp("s_cmp_lt_u32", sKoff, 262144), branch("s_cbranch_scc1", L("fb2"))]
        F4 = [nop(8), branch("s_branch", L("epi"))]
        body = AL + ALa + ALb
        trace = P + QLt + QT + T + A0 + body + body + AL + ALa[:cut] + TL + EP + FB + F1 + F1 + F2 + F3 + F3 + F4 + EP
        prog = P + QL + QT + T + A0 + body + TL + EP + FB + F1 + F2 + F3 + F4
        return trace, prog

def touch_wo_setup():
    o = []
    e = o.append
    srd = SRD_W
    e(salu("s_mov_b32", srd[0], "s92")); e(salu("s_mov_b32", srd[1], "s93")); e(salu("s_mov_b32", srd[2], 8388608)); e(salu("s_mov_b32", srd[3], 0x20000))
    e(salu("s_lshl_b32", sXoff, "s2", 15)); e(salu("s_lshl_b32", sT[1], sHH, 14)); e(salu("s_add_u32", sXoff, sXoff, sT[1]))
    e(salu("s_add_u32", sWoff, sXoff, 8192))
    return o

def code_touch():
    o = []
    e = o.append
    va = V(2, 2)
    e(raw("s_getpc_b64 s[56:57]", "salu", wr=[sTmp2]))
    e(raw("L1_pc:", "label"))
    e(raw("s_sub_u32 s56, s56, L1_pc-attn_kernel", "salu", rd=[sTmp2], wr=[sTmp2, "scc"]))
    e(raw("s_subb_u32 s57, s57, 0", "salu", rd=[sTmp2], wr=[sTmp2, "scc"]))
    e(salu("s_lshr_b32", sT[0], "s2", 3)); e(salu("s_lshl_b32", sT[0], sT[0], 1)); e(salu("s_add_u32", sT[0], sT[0], sHH)); e(salu("s_lshl_b32", sT[0], sT[0], 11))
    e(valu("v_add_u32", va[0], sT[0], vWd))
    e(raw(f"v_min_u32 {va[0]}, L_code_end-attn_kernel-4, {va[0]}", "valu", rd=[va[0]], wr=[va[0]]))
    e(valu("v_mov_b32", va[1], "s57"))
    e(raw(f"v_add_co_u32 {va[0]}, vcc, s56, {va[0]}", "valu", rd=[va[0], "s56"], wr=[va[0], "vcc"]))
    e(nop(2))
    e(raw(f"v_addc_co_u32 {va[1]}, vcc, 0, {va[1]}, vcc", "valu", rd=[va[1], "vcc"], wr=[va[1], "vcc"]))
    e(raw("s_mov_b64 exec, 0xffff", "salu"))
    e(raw(f"global_load_dword {vKd2}, {va}, off", "vmem_l", rd=[va], wr=[vKd2]))
    e(raw("s_mov_b64 exec, -1", "salu"))
    return o

def common_addr():
    P = []
    e = P.append
    vRho = vT2
    e(valu("v_lshrrev_b32", vT0, 4, vLane))
    e(valu("v_and_b32", vRho, 15, vLane))
    e(valu("v_and_b32", vT1, 6, vRho)); e(valu("v_xor_b32", vT1, vT1, vT0)); e(valu("v_lshlrev_b32", vXr[0], 4, vT1))
    e(valu("v_and_b32", vT1, 7, vRho)); e(valu("v_lshl_add_u32", vXr[0], vT1, 7, vXr[0]))
    e(valu("v_lshrrev_b32", vT1, 3, vRho)); e(valu("v_lshl_add_u32", vXr[0], vT1, 15, vXr[0]))
    e(salu("s_lshl_b32", sT[0], sHALF, 16)); e(valu("v_add_u32", vXr[0], sT[0], vXr[0]))
    e(valu("v_xor_b32", vXr[1], 64, vXr[0]))
    e(valu("v_lshlrev_b32", vWr[0], 4, vRho)); e(valu("v_lshrrev_b32", vT1, 2, vRho)); e(valu("v_lshl_add_u32", vWr[0], vT1, 8, vWr[0]))
    e(valu("v_lshl_add_u32", vWr[0], vT0, 11, vWr[0]))
    e(valu("v_add_u32", vWr[0], sWld, vWr[0]))
    for ds in range(1, 4): e(valu("v_xor_b32", vWr[ds], ds * 64, vWr[0]))
    def kappa(dst, rho, tmp):
        e(valu("v_and_b32", dst, 3, rho)); e(valu("v_lshrrev_b32", tmp, 3, rho)); e(valu("v_lshl_add_u32", dst, tmp, 2, dst))
        e(valu("v_and_b32", tmp, 4, rho)); e(valu("v_lshl_add_u32", dst, tmp, 2, dst))
    kappa(vKr[0], vRho, vT1)
    e(valu("v_lshlrev_b32", vKr[0], 8, vKr[0]))
    e(valu("v_and_b32", vT1, 7, vRho)); e(valu("v_lshlrev_b32", vT1, 1, vT1)); e(valu("v_xor_b32", vT1, vT1, vT0))
    e(valu("v_lshl_add_u32", vKr[0], vT1, 4, vKr[0])); e(valu("v_add_u32", vKr[0], sWld, vKr[0]))
    for ds in range(1, 4): e(valu("v_xor_b32", vKr[ds], ds * 64, vKr[0]))
    e(salu("s_sub_u32", sT[2], sSPld, sWld))
    for ds in range(4): e(valu("v_add_u32", vKs[ds], sT[2], vKr[ds]))
    e(valu("v_lshrrev_b32", vRho, 2, vLane))
    kappa(vVr[0], vRho, vT1)
    e(valu("v_lshlrev_b32", vVr[0], 8, vVr[0]))
    e(valu("v_and_b32", vT1, 7, vRho)); e(valu("v_lshl_add_u32", vVr[0], vT1, 5, vVr[0]))
    e(valu("v_and_b32", vT1, 3, vLane)); e(valu("v_lshl_add_u32", vVr[0], vT1, 3, vVr[0]))
    e(salu("s_add_u32", sT[1], sWld, 32 * KB)); e(valu("v_add_u32", vVr[0], sT[1], vVr[0]))
    for dt in range(1, 8): e(valu("v_xor_b32", vVr[dt], dt * 32, vVr[0]))
    e(valu("v_lshlrev_b32", vT1, 3, vT0)); e(valu("v_mov_b32", vOst, sum(b << (8 * i) for i, b in enumerate(k2.OBLK)))); e(valu("v_lshrrev_b32", vOst, vT1, vOst))
    e(valu("v_and_b32", vOst, 0xff, vOst)); e(valu("v_lshlrev_b32", vOst, 8, vOst)); e(valu("v_and_b32", vT1, 15, vLane)); e(valu("v_lshl_add_u32", vOst, vT1, 4, vOst))
    e(salu("s_lshr_b32", sOoff, sHEAD, 3)); e(salu("s_lshl_b32", sOoff, sOoff, 4)); e(salu("s_and_b32", sT[0], sHEAD, 7)); e(salu("s_add_u32", sOoff, sOoff, sT[0]))
    e(salu("s_mul_i32", sOoff, sOoff, 26 * k2.FU)); e(salu("s_mul_i32", sT[0], sHALF, 7 * k2.FU)); e(salu("s_add_u32", sOoff, sOoff, sT[0]))
    e(salu("s_mov_b32", sScale[0], f32(QSCALE))); e(salu("s_mov_b32", sScale[1], f32(QSCALE)))
    e(salu("s_mov_b32", sFB, 0)); e(salu("s_mov_b32", sCnt, 0))
    return P

def build(name, stamp=False, fused=False):
    ST = Stamps(stamp)
    P = []
    e = P.append
    e(scmp("s_cmp_ge_u32", "s2", 256)); e(branch("s_cbranch_scc1", "L1_end"))
    P += ST()
    e(raw("s_load_dwordx8 s[28:35], s[0:1], 0", "smem"))
    e(raw("s_load_dwordx8 s[92:99], s[0:1], 32", "smem"))
    e(valu("v_lshrrev_b32", vT0, 6, "v0")); e(valu("v_and_b32", vLane, 63, "v0"))
    e(raw(f"v_readfirstlane_b32 {sW}, {vT0}", "valu", rd=[vT0], wr=[sW]))
    e(salu("s_and_b32", sT[0], "s2", 7)); e(salu("s_lshr_b32", sT[1], "s2", 3))
    e(salu("s_and_b32", sB, sT[0], 1)); e(salu("s_lshl_b32", sB, sB, 3)); e(salu("s_and_b32", sT[2], sT[1], 7)); e(salu("s_add_u32", sB, sB, sT[2]))
    e(salu("s_lshr_b32", sHEAD, sT[0], 1)); e(salu("s_lshl_b32", sHEAD, sHEAD, 2)); e(salu("s_lshr_b32", sT[2], sT[1], 3)); e(salu("s_add_u32", sHEAD, sHEAD, sT[2]))
    e(salu("s_lshr_b32", sHH, sW, 1)); e(salu("s_and_b32", sHALF, sW, 1))
    e(salu("s_lshl_b32", sHEAD, sHEAD, 1)); e(salu("s_add_u32", sHEAD, sHEAD, sHH))
    e(salu("s_lshl_b32", sXld, sHH, 15))
    e(salu("s_lshl_b32", sWld, sHH, 16))
    e(salu("s_lshl_b32", sSPld, sHH, 14)); e(salu("s_add_u32", sSPld, sSPld, 128 * KB))
    e(valu("v_lshrrev_b32", vT0, 3, vLane)); e(valu("v_and_b32", vT1, 6, vT0)); e(valu("v_and_b32", vXd, 7, vLane))
    e(valu("v_xor_b32", vXd, vXd, vT1)); e(valu("v_lshlrev_b32", vXd, 4, vXd)); e(valu("v_lshl_add_u32", vXd, vT0, 11, vXd))
    e(salu("s_lshl_b32", sT[1], sHH, 14))
    e(valu("v_add_u32", vXd, sT[1], vXd))
    e(valu("v_lshrrev_b32", vT0, 4, vLane)); e(valu("v_lshlrev_b32", vT1, 2, vT0)); e(valu("v_and_b32", vWd, 15, vLane))
    e(valu("v_xor_b32", vWd, vWd, vT1)); e(valu("v_lshlrev_b32", vWd, 4, vWd)); e(valu("v_lshl_add_u32", vWd, vT0, 13, vWd))
    e(valu("v_lshlrev_b32", vT1, 1, vT0)); e(valu("v_and_b32", vKd, 15, vLane)); e(valu("v_xor_b32", vKd, vKd, vT1))
    e(valu("v_lshlrev_b32", vKd, 4, vKd)); e(valu("v_lshl_add_u32", vKd, vT0, 8, vKd))
    e(valu("v_xor_b32", vKd2, 0x1080, vKd))
    e(salu("s_mov_b32", sXoff, 0)); e(salu("s_mov_b32", sWoff, 0)); e(salu("s_mov_b32", sKlin, 0))
    e(salu("s_lshr_b32", sRot, "s2", 3)); e(salu("s_lshl_b32", sT[0], "s2", 2)); e(salu("s_add_u32", sRot, sRot, sT[0]))
    e(salu("s_lshl_b32", sT[0], sHH, 4)); e(salu("s_add_u32", sRot, sRot, sT[0])); e(salu("s_and_b32", sRot, sRot, 0 if OPT.get("emu15") or OPT.get("norot") else 31)); e(salu("s_lshl_b32", sRot, sRot, 13))
    e(salu("s_mov_b32", sKoff, sRot))
    e(raw("s_waitcnt lgkmcnt(0)", "other"))
    if OPT.get("pstamp"): P += ST()
    e(salu("s_mul_i32", sT[0], sB, 425984))
    e(salu("s_add_u32", SRD_X[0], "s28", sT[0])); e(salu("s_addc_u32", SRD_X[1], "s29", 0)); e(salu("s_mov_b32", SRD_X[2], 425984)); e(salu("s_mov_b32", SRD_X[3], 0x20000))
    e(salu("s_lshl_b32", sT[0], sHEAD, 8))
    e(salu("s_add_u32", SRD_W[0], "s34", sT[0])); e(salu("s_addc_u32", SRD_W[1], "s35", 0)); e(salu("s_sub_u32", SRD_W[2], 8388608, sT[0])); e(salu("s_mov_b32", SRD_W[3], 0x20000))
    e(salu("s_lshl_b32", sT[0], sB, 5)); e(salu("s_add_u32", sT[0], sT[0], sHEAD)); e(salu("s_lshl_b32", sT[0], sT[0], 18))
    e(salu("s_add_u32", SRD_K[0], "s30", sT[0])); e(salu("s_addc_u32", SRD_K[1], "s31", 0)); e(salu("s_mov_b32", SRD_K[2], 262144 + int(OPT.get("emu15", "0")) * 8192)); e(salu("s_mov_b32", SRD_K[3], 0x20000))
    e(salu("s_add_u32", SRD_V[0], "s32", sT[0])); e(salu("s_addc_u32", SRD_V[1], "s33", 0)); e(salu("s_mov_b32", SRD_V[2], 262144 + int(OPT.get("emu15", "0")) * 8192)); e(salu("s_mov_b32", SRD_V[3], 0x20000))
    if OPT.get("emu15"):
        e(salu("s_sub_u32", sT[1], 134217728, sT[0])); e(salu("s_min_u32", SRD_K[2], SRD_K[2], sT[1])); e(salu("s_min_u32", SRD_V[2], SRD_V[2], sT[1]))
    e(salu("s_lshl_b32", sT[0], sB, 22))
    e(salu("s_add_u32", SRD_O[0], "s98", sT[0])); e(salu("s_addc_u32", SRD_O[1], "s99", 0)); e(salu("s_mov_b32", SRD_O[2], k2.OSTRIDE)); e(salu("s_mov_b32", SRD_O[3], 0x20000))
    e(scmp("s_cmp_eq_u32", sHALF, 0)); e(branch("s_cbranch_scc1", "L1a_start"))
    k0 = ST.k
    progs = []
    for NT, loader, tag in ((6, True, "b"), (7, False, "a")):
        ST.k = k0
        trace, prog = Role(NT, loader, tag, ST).build()
        trace = P + trace
        for _ in range(5):
            if auto_lgkm(trace) == 0: break
        else: raise RuntimeError("lgkm not stable")
        probs = check_hazards(expand(trace), name + tag)
        for p in probs: print(p)
        assert not probs
        progs.append(prog)
    END = [label("L1_end"), raw("s_endpgm")]
    return text(expand(P + progs[0] + progs[1] + END)) + k2.build_fused(ST) + "L_code_end:\n"

if __name__ == "__main__":
    s = build("k1")
    print(len(s.splitlines()), "lines")
```

```python
from fw import *
import os
KB = 1024
flat = lambda gs: [o for g in gs for o in g]
OPT = dict(kv.split('=') for kv in os.environ.get('K2OPT', '').split(',') if kv)
sW = S(3)
SRD_O, SRD_W, SRD_C = S(8, 4), S(12, 4), S(16, 4)
sLd, sOoff, sWbase, sCnt, sB, sHALF, sNT, sWs, sWoff, sStage, sTw = [S(28 + i) for i in range(11)]
sT = [S(46), S(47), S(48), S(49)]
pWO, pOUT, pDBG, pWS = S(92, 2), S(94, 2), S(96, 2), S(98, 2)
vLane = V(1)
vT0, vT1, vT2 = V(4), V(5), V(24)
vOl = V(30)
vWd = [V(7 + i) for i in range(4)]
vPa, vSa, vSv, vVal = V(11), V(12), V(0), V(29)
vPv = V(24, 4)
FLAGOFF = 72 << 20
FU = 2048
OBLK = [int(c) for c in OPT.get('oblk', '0236')]
WCOPY = 80 << 20
RELOC = OPT.get('reloc', '1') == '1'
STAMPOFF = 96 << 20
vWr = [V(13 + i) for i in range(8)]
vSt, vRa, vRb, vRc = V(21), V(22), V(23), V(28)
ACC0 = 32
def acc(t, f): return V(ACC0 + f * 28 + t * 4, 4)
def Wset(p, f): return A(192 + 32 * p + 4 * f, 4)
def Oset(p, t):
    q = p * 7 + t
    return A(32 * (q // 4) + 16 + 4 * (q % 4), 4)
def Hold(i): return A(32 * (i // 4) + 4 * (i % 4), 4)
SRD_O1, sO1, sO16 = S(24, 4), S(54), S(44)
def held_store(i):
    ds, t = 2 + i // 7, i % 7
    return [salu("s_add_u32", sT[0], sO16 if t == 6 else sO1, (((ds >> 1) * 16 + (ds & 1)) * 13 + t) * FU), bstore(Hold(i), vOl, SRD_O1, sT[0], 0, "sc1")]
WFLAG = OPT.get("wflag", "sc1")

def inter(mf, gaps):
    out = []
    assert all(0 <= k < len(mf) for k in gaps), (sorted(gaps), len(mf))
    order = lambda i: 0 if i.kind in ("salu", "wait", "barrier", "branch", "label", "smem", "nop") else (1 if i.kind in ("lds_r", "lds_w", "dma", "vmem_l", "vmem_s") else 2)
    for k, m in enumerate(mf):
        out.append(m)
        out.extend(sorted(gaps.get(k, []), key=order))
    return out

def woff(s): return ((s & 14) << 17) + ((s & 16) << 13) + ((s & 1) << 16)
def dma_w(slot, const=None):
    g = []
    for p in range(8):
        ops = []
        if p % 4 == 0 or const is not None:
            ops.append(salu("s_add_u32", "m0", sLd, slot * 8 * KB + (p >> 2) * 4096))
            ops.append(salu("s_add_u32", sTw, sWoff if const is None else sWbase, (p >> 2) * (4096 if OPT.get('lin') else 32768) + (const or 0)))
        ops.append(dma(vWd[p & 3], SRD_W, sTw, (p & 3) * KB, WFLAG))
        g.append(ops)
    return g
def advw():
    return [salu("s_add_u32", sWs, sWs, 1), salu("s_and_b32", sT[2], sWs, 14), salu("s_lshl_b32", sT[2], sT[2], 17), salu("s_add_u32", sWoff, sWbase, sT[2]),
            salu("s_and_b32", sT[2], sWs, 16), salu("s_lshl_b32", sT[2], sT[2], 13), salu("s_add_u32", sWoff, sWoff, sT[2]),
            salu("s_and_b32", sT[2], sWs, 1), salu("s_lshl_b32", sT[2], sT[2], 16), salu("s_add_u32", sWoff, sWoff, sT[2])]
def advo(): return [salu("s_add_u32", sOoff, sOoff, 13 * FU)]
def load_o(p, t):
    ops = []
    if t % 2 == 0: ops.append(salu("s_add_u32", sT[1], sOoff, (t >> 1) * 2 * FU))
    ops.append(bload(Oset(p, t), vOl, SRD_O, sT[1], (t & 1) * FU, "sc1"))
    return ops
def reads_w(s):
    return [ds_r("ds_read_b64_tr_b16", Wset(s & 1, f)[2 * a:2 * a + 2], vWr[f], (s & 3) * 8 * KB + a * 4096) for f in range(8) for a in range(2)]
def poll_load(): return raw(f"global_load_dwordx4 {vPv}, {vPa}, {pWS} sc1", "vmem_l", rd=[vPa], wr=[vPv])
def signal(tag, val):
    return [scmp("s_cmp_lg_u32", sW, 0), branch("s_cbranch_scc1", tag), valu("v_mov_b32", vSv, val), raw("s_mov_b64 exec, 1", "salu"),
            raw(f"global_store_dword {vSa}, {vSv}, {pWS} sc1", "vmem_s", rd=[vSa, vSv]), raw("s_mov_b64 exec, -1", "salu"), label(tag)]
def poll_check(tag, stage):
    o = [salu("s_mov_b32", sT[3], 0x80000), label(tag + "_c"),
         valu("v_min_u32", vPv[0], vPv[0], vPv[1]), valu("v_min3_u32", vPv[0], vPv[0], vPv[2], vPv[3]), nop(1),
         raw(f"v_readfirstlane_b32 {sT[2]}, {vPv[0]}", "valu", rd=[vPv[0]], wr=[sT[2]]),
         salu("s_sub_u32", sT[3], sT[3], 1), branch("s_cbranch_scc1", tag + "_go"),
         scmp("s_cmp_ge_u32", sT[2], stage), branch("s_cbranch_scc1", tag + "_go"),
         raw("s_sleep 2", "other"), poll_load(), wait(vm=0), branch("s_branch", tag + "_c"), label(tag + "_go")]
    return o
def valid_load(): return raw(f"global_load_dword {vVal}, {vT1}, {pDBG} sc1", "vmem_l", rd=[vT1], wr=[vVal])
def valid_check(tag):
    return [salu("s_mov_b32", sT[3], 0x80000), label(tag + "_c"),
            raw(f"v_cmp_gt_u32 vcc, 4, {vVal}", "valu", rd=[vVal], wr=["vcc"]),
            salu("s_sub_u32", sT[3], sT[3], 1), branch("s_cbranch_scc1", tag + "_go"), nop(4),
            branch("s_cbranch_vccz", tag + "_go"),
            raw("s_sleep 8", "other"), valid_load(), wait(vm=0), branch("s_branch", tag + "_c"), label(tag + "_go")]
def flag_addr(dst, b1, head1, tmp):
    return [salu("s_lshr_b32", dst, head1, 3), salu("s_lshl_b32", tmp, b1, 2), salu("s_add_u32", dst, dst, tmp), salu("s_lshl_b32", dst, dst, 7),
            salu("s_and_b32", tmp, head1, 6), salu("s_lshl_b32", tmp, tmp, 1), salu("s_add_u32", dst, dst, tmp), salu("s_add_u32", dst, dst, FLAGOFF)]

OSTRIDE = 4 << 20
vTch = V(5)
sWarm = S(43)
def early_setup(b1, head1):
    P = []; e = P.append
    P += flag_addr(sT[0], b1, head1, sT[1])
    e(valu("v_mov_b32", vSa, sT[0]))
    e(salu("s_and_b32", sT[0], "s2", 7)); e(salu("s_lshr_b32", sT[1], "s2", 3))
    alt = OPT.get("map") == "1"
    e(salu("s_lshr_b32", sB, sT[0], 1)); e(salu("s_lshl_b32", sB, sB, 2)); e(salu("s_lshr_b32" if alt else "s_and_b32", sT[2], sT[1], 3)); e(salu("s_add_u32", sB, sB, sT[2]))
    e(salu("s_lshr_b32", sHALF, sT[1], 2)); e(salu("s_and_b32", sHALF, sHALF, 1))
    e(salu("s_and_b32", sNT, sT[0], 1)); e(salu("s_lshl_b32", sNT, sNT, 2)); e(salu("s_and_b32" if alt else "s_lshr_b32", sT[2], sT[1], 3)); e(salu("s_add_u32", sNT, sNT, sT[2]))
    e(salu("s_lshl_b32", sLd, sW, 15))
    ta, tb = vWd[2], vWd[3]
    e(valu("v_lshrrev_b32", vT0, 4, vLane)); e(valu("v_lshlrev_b32", ta, 1, vT0)); e(valu("v_and_b32", tb, 15, vLane))
    e(valu("v_xor_b32", tb, tb, ta)); e(valu("v_lshlrev_b32", tb, 4, tb)); e(valu("v_lshl_add_u32", vWd[0], vT0, 8 if OPT.get('lin') else 11, tb))
    e(valu("v_lshrrev_b32", ta, 1, vLane)); e(valu("v_and_b32", tb, 1, vLane)); e(valu("v_lshlrev_b32", tb, 7, tb)); e(valu("v_lshl_add_u32", vTch, ta, 8 if OPT.get('lin') else 11, tb))
    PS = 0 if OPT.get('lin') else 7168
    e(valu("v_xor_b32", vWd[1], 128, vWd[0])); e(valu("v_add_u32", vWd[1], PS, vWd[1]))
    e(valu("v_add_u32", vWd[2], 2 * PS, vWd[0])); e(valu("v_add_u32", vWd[3], 2 * PS, vWd[1]))
    e(salu("s_lshl_b32", sWbase, sW, 21))
    e(salu("s_lshl_b32", sWarm, sB, 1)); e(salu("s_add_u32", sWarm, sWarm, sHALF)); e(salu("s_lshl_b32", sWarm, sWarm, 2)); e(salu("s_add_u32", sWarm, sWarm, sW)); e(salu("s_lshl_b32", sWarm, sWarm, 16))
    e(salu("s_mul_i32", sOoff, sW, 32 * 13 * FU)); e(salu("s_mul_i32", sT[0], sHALF, 7 * FU)); e(salu("s_add_u32", sOoff, sOoff, sT[0]))
    e(salu("s_lshl_b32", sT[0], sNT, 8))
    e(salu("s_add_u32", SRD_W[0], pWO[0], sT[0])); e(salu("s_addc_u32", SRD_W[1], pWO[1], 0)); e(salu("s_sub_u32", SRD_W[2], 8388608, sT[0])); e(salu("s_mov_b32", SRD_W[3], 0x20000))
    if RELOC:
        e(salu("s_add_u32", sT[0], sT[0], WCOPY - 256)); e(salu("s_add_u32", sT[1], pWS[0], sT[0])); e(salu("s_addc_u32", sT[2], pWS[1], 0))
        e(salu("s_and_b32", sT[0], sNT, 3)); e(scmp("s_cmp_eq_u32", sT[0], 1))
        e(salu("s_cselect_b32", SRD_W[0], sT[1], SRD_W[0])); e(salu("s_cselect_b32", SRD_W[1], sT[2], SRD_W[1]))
        e(salu("s_cselect_b32", sWarm, 0x1000000, sWarm))
    e(salu("s_lshl_b32", sT[0], sB, 22))
    e(salu("s_add_u32", SRD_O[0], pWS[0], sT[0])); e(salu("s_addc_u32", SRD_O[1], pWS[1], 0)); e(salu("s_mov_b32", SRD_O[2], OSTRIDE)); e(salu("s_mov_b32", SRD_O[3], 0x20000))
    e(salu("s_lshl_b32", sT[1], sB, 2)); e(salu("s_add_u32", sT[0], sT[1], sW)); e(salu("s_lshl_b32", sT[0], sT[0], 7)); e(salu("s_add_u32", sT[0], sT[0], FLAGOFF))
    e(valu("v_mov_b32", vPa, sT[0]))
    e(salu("s_mov_b32", sStage, 0)); e(salu("s_mov_b32", sCnt, 0))
    e(salu("s_mov_b32", sWs, WL)); e(salu("s_add_u32", sWoff, sWbase, woff(WL)))
    return P
def valid_setup(): return [valu("v_lshlrev_b32", vT1, 2, vLane), valid_load()]
WL = int(OPT.get("wl", "4"))
def prefetch_groups(): return flat([dma_w(i, woff(i)) for i in range(WL)])
def late_setup(NT):
    P = []; e = P.append
    e(salu("s_mul_i32", sT[0], sB, 425984))
    e(salu("s_add_u32", SRD_C[0], pOUT[0], sT[0])); e(salu("s_addc_u32", SRD_C[1], pOUT[1], 0)); e(salu("s_mov_b32", SRD_C[2], 425984)); e(salu("s_mov_b32", SRD_C[3], 0x20000))
    e(valu("v_lshrrev_b32", vT1, 2, vLane)); e(valu("v_lshlrev_b32", vWr[0], 8, vT1))
    e(valu("v_and_b32", vT1, 7, vT1)); e(valu("v_lshl_add_u32", vWr[0], vT1, 5, vWr[0]))
    e(valu("v_and_b32", vT1, 3, vLane)); e(valu("v_lshl_add_u32", vWr[0], vT1, 3, vWr[0]))
    e(salu("s_lshl_b32", sT[0], sW, 6)); e(valu("v_xor_b32", vWr[0], sT[0], vWr[0]))
    e(valu("v_add_u32", vWr[0], sLd, vWr[0]))
    for f in range(1, 8): e(valu("v_xor_b32", vWr[f], f * 32, vWr[0]))
    return P
def late_setup2(NT):
    P = []; e = P.append
    e(valu("v_and_b32", vT1, 15, vLane)); e(valu("v_lshlrev_b32", vSt, 11, vT1))
    e(valu("v_and_b32", vT1, 1, vT0)); e(valu("v_lshl_add_u32", vSt, vT1, 5, vSt))
    e(valu("v_lshrrev_b32", vT1, 1, vT0)); e(valu("v_lshl_add_u32", vSt, vT1, 4, vSt))
    e(salu("s_mul_i32", sT[2], sHALF, 112 * 2048)); e(salu("s_lshl_b32", sT[3], sNT, 8)); e(salu("s_add_u32", sT[2], sT[2], sT[3]))
    e(salu("s_lshl_b32", sT[3], sW, 6)); e(salu("s_add_u32", sT[2], sT[2], sT[3]))
    e(valu("v_add_u32", vSt, sT[2], vSt))
    for f in range(8):
        for t in range(NT):
            for k in range(4): e(valu("v_mov_b32", acc(t, f)[k], 0))
    return P

class Body:
    def __init__(self, NT, tag, ST):
        self.NT, self.tag, self.ST = NT, tag, ST
    def kstep(self, s, vm, lw=True, lo=True, reads=True, extra=(), poll=False, st=(), head=()):
        NT = self.NT
        mf = [mfma16(acc(t, f), Wset(s & 1, f), Oset(s & 1, t), acc(t, f)) for t in range(NT) for f in range(8)]
        n = len(mf)
        gaps = {}
        add = lambda g, ops: gaps.setdefault(g, []).extend(ops)
        if reads:
            for k, r in enumerate(reads_w(s + 1)): add(1 + 2 * k, [r])
        if poll: add(2, [poll_load()])
        for k, i in enumerate(st): add(13 + 20 * k, held_store(i))
        tailops = []
        if lw:
            pos = [4 + p * (n - 6) // 8 // 2 * 2 for p in range(8)]
            pos = [q + 2 if q % 8 == 0 else q for q in pos]
            for q, g in zip(pos, dma_w((s + WL) & 3)): add(q, g)
            for i, op in enumerate(advw()): add(pos[4] + 1 + i, [op])
        if lo:
            for t in range(NT - 1): add(8 * t + 8, load_o(s & 1, t))
            tailops = load_o(s & 1, NT - 1) + advo()
        return [wait(vm=vm, lgkm=0)] + list(head) + inter(mf, gaps) + tailops + list(extra)
    def build(self):
        NT, ST, tag = self.NT, self.ST, self.tag
        per = 8 + NT
        P = []
        for s in range(2):
            for t in range(NT): P += load_o(s, t)
            P += advo()
        P += late_setup(NT)
        P.append(wait(vm=2 * NT))
        P += reads_w(0)
        P += late_setup2(NT)
        P.append(wait(vm=NT))
        P += ST()
        for s in range(8):
            P += self.kstep(s, per + (2 if 1 <= s else 0), st=(2 * s, 2 * s + 1) if s < 7 else ())
        P += [wait(vm=per), barrier()] + signal(f"L2{tag}_sig2", 2)
        P.append(salu("s_mov_b32", sCnt, 2))
        L = [label(f"L2{tag}_loop")]
        chk = [scmp("s_cmp_lg_u32", sCnt, 3), branch("s_cbranch_scc1", f"L2{tag}_p2_go")] + poll_check(f"L2{tag}_p2", 2)
        for s in range(4):
            L += self.kstep(s, per, poll=(s == 3), head=chk if s == 1 else (),
                            extra=[salu("s_add_u32", sCnt, sCnt, 1), scmp("s_cmp_lt_u32", sCnt, 7), branch("s_cbranch_scc1", f"L2{tag}_loop")] if s == 3 else ())
        T = ST() + self.kstep(0, per, lw=(WL == 3)) + self.kstep(1, per if WL == 3 else NT, lw=False)
        mm = lambda p, fs: [mfma16(acc(t, f), Wset(p, f), Oset(p, t), acc(t, f)) for t in range(NT) for f in fs]
        hiF, loF = (4, 5, 6, 7), (0, 1, 2, 3)
        mf = mm(0, hiF) + mm(1, hiF) + mm(0, loF) + mm(1, loF)
        n4 = 4 * NT
        gaps = {}
        add = lambda g, ops: gaps.setdefault(g, []).extend(ops)
        rd = reads_w(3); rd = rd[8:] + rd[:8]
        for k, r in enumerate(rd): add(k, [r])
        add(1, [valu("v_lshl_add_u32", vRa, vLane, 4, sLd)])
        add(2, [valu("v_xor_b32", vRb, 2 << 15, vRa)])
        add(3, [valu("v_xor_b32", vRc, 3 << 15, vRa)])
        add(n4 - 1, [wait(vm=0)])
        wr = [(t, f) for t in range(NT) for f in hiF]
        g0 = n4 + 10
        for i, (t, f) in enumerate(wr): add(g0 + i * (len(mf) - g0) // len(wr), [ds_w("ds_write_b128", vRa, acc(t, f), ((f ^ 6) * NT + t) * KB if False else ((2 * (1 - ((f >> 1) & 1)) + (f & 1)) * NT + t) * KB)])
        T += [wait(vm=NT, lgkm=0)] + inter(mf, gaps)
        Rd = ST()
        e = Rd.append
        def addt(d, g): return [valu("v_pk_add_f32", d[2 * k:2 * k + 2], d[2 * k:2 * k + 2], g[2 * k:2 * k + 2]) for k in range(2)]
        e(wait(lgkm=0)); e(barrier())
        for f in (2, 3):
            for t in range(NT): e(ds_r("ds_read_b128", acc(t, f + 4), vRb, ((f - 2) * NT + t) * KB))
        r2 = [ds_r("ds_read_b128", acc(t, f + 4), vRb, ((2 + f) * NT + t) * KB) for f in (0, 1) for t in range(NT)]
        for f in (2, 3):
            for t in range(NT):
                Rd += addt(acc(t, f), acc(t, f + 4))
                e(ds_w("ds_write_b128", vRb, acc(t, f), ((f - 2) * NT + t) * KB))
                e(r2.pop(0))
        for f in (0, 1):
            for t in range(NT): Rd += addt(acc(t, f), acc(t, f + 4))
        e(wait(lgkm=0)); e(barrier())
        for t in range(NT):
            for f in (0, 1): e(ds_r("ds_read_b128", acc(t, f + 2), vRc, (f * NT + t) * KB))
        for t in range(NT):
            dst = acc(t, 4)
            for f in (0, 1): Rd += addt(acc(t, f), acc(t, f + 2))
            for f in (0, 1):
                for k in range(2): e(valu("v_cvt_pk_bf16_f32", dst[2 * f + k], acc(t, f)[2 * k], acc(t, f)[2 * k + 1]))
            e(salu("s_mov_b32", sT[0], t * 32768)); e(nop(1))
            e(permswap("v_permlane16_swap_b32", dst[0], dst[2])); e(permswap("v_permlane16_swap_b32", dst[1], dst[3]))
            e(bstore(dst, vSt, SRD_C, sT[0], 0, OPT.get('cflag', 'sc1').replace('+', ' ')))
        Rd += ST()
        Rd += ST.dump("s[98:99]", sW, STAMPOFF)
        e(raw("s_endpgm"))
        return [P + L + L + T + Rd], P + L + T + Rd

def build_fused(ST):
    P = [label("L1_done")]; e = P.append
    P += poll_check("L2_p1", 1)
    P += ST()
    k0 = ST.k
    e(scmp("s_cmp_eq_u32", sHALF, 1)); e(branch("s_cbranch_scc1", "L2b_start"))
    progs = []
    for NT, tag in ((7, "a"), (6, "b")):
        ST.k = k0
        traces, prog = Body(NT, tag, ST).build()
        for tr in traces:
            for _ in range(5):
                if auto_lgkm(P + tr) == 0: break
            else: raise RuntimeError("lgkm not stable")
        for tr in traces:
            probs = check_hazards(expand(P + tr), "k2")
            for p in probs: print(p)
            assert not probs
        progs.append(prog)
    return text(expand(P + progs[0] + [label("L2b_start")] + progs[1]))
```

```python
import re

def R(pre, lo, n=1):
    return [f"{pre}{lo+i}" for i in range(n)]
def rng(pre, lo, n):
    return f"{pre}{lo}" if n == 1 else f"{pre}[{lo}:{lo+n-1}]"

class Reg:
    def __init__(self, f, b, n=1): self.f, self.b, self.n = f, b, n
    def __str__(self): return rng(self.f, self.b, self.n)
    def regs(self): return R(self.f, self.b, self.n)
    def __getitem__(self, i):
        if isinstance(i, slice):
            st = i.start or 0; en = i.stop if i.stop is not None else self.n
            assert 0 <= st < en <= self.n, (st, en, self.n)
            return Reg(self.f, self.b + st, en - st)
        assert 0 <= i < self.n, (i, self.n)
        return Reg(self.f, self.b + i, 1)
def V(b, n=1): return Reg('v', b, n)
def A(b, n=1): return Reg('a', b, n)
def S(b, n=1): return Reg('s', b, n)

def regs_of(x):
    if isinstance(x, Reg): return x.regs()
    if isinstance(x, str):
        if x in ("vcc", "exec", "m0", "scc"): return [x]
        m = re.fullmatch(r"-?\|?([vas])(\d+)\|?", x)
        if m: return [m.group(1) + m.group(2)]
        m = re.fullmatch(r"([vas])\[(\d+):(\d+)\]", x)
        if m: return R(m.group(1), int(m.group(2)), int(m.group(3)) - int(m.group(2)) + 1)
    return []

class I:
    __slots__ = ("text", "kind", "rd", "wr", "post_lgkm", "pre_lgkm", "mf", "nstates", "comment")
    def __init__(self, text, kind, rd=(), wr=(), mf=None, nstates=1):
        self.text, self.kind = text, kind
        self.rd = set(); self.wr = set()
        for x in rd: self.rd.update(regs_of(x))
        for x in wr: self.wr.update(regs_of(x))
        self.post_lgkm = None; self.pre_lgkm = None
        self.mf = mf
        self.nstates = nstates
    def __repr__(self): return self.text

def mfma16(D, Aop, Bop, C):
    c = C if isinstance(C, Reg) else None
    return I(f"v_mfma_f32_16x16x32_bf16 {D}, {Aop}, {Bop}, {C}", "mfma", rd=[Aop, Bop] + ([c] if c else []), wr=[D],
             mf=dict(A=set(Aop.regs()), B=set(Bop.regs()), C=set(c.regs()) if c else set(), D=set(D.regs()), passes=4))
def valu(op, dst, *src, extra="", rmw=False, wr_extra=(), rd_extra=()):
    t = f"{op} {dst}, " + ", ".join(str(s) for s in src) + (" " + extra if extra else "")
    kind = "trans" if op.split("_e")[0] in ("v_exp_f32", "v_rcp_f32", "v_log_f32", "v_rsq_f32") else "valu"
    rd = list(src) + ([dst] if rmw else []) + list(rd_extra)
    return I(t, kind, rd=rd, wr=[dst] + list(wr_extra))
def permswap(op, a, b):
    return I(f"{op} {a}, {b}", "perm", rd=[a, b], wr=[a, b])
def salu(op, dst, *src):
    t = f"{op} {dst}, " + ", ".join(str(s) for s in src)
    return I(t, "salu", rd=list(src), wr=[dst, "scc"])
def scmp(op, a, b):
    return I(f"{op} {a}, {b}", "salu", rd=[a, b], wr=["scc"])
def ds_r(op, dst, addr, off):
    assert 0 <= off < 65536, off
    return I(f"{op} {dst}, {addr} offset:{off}", "lds_r", rd=[addr], wr=[dst])
def ds_w(op, addr, src, off):
    assert 0 <= off < 65536, off
    return I(f"{op} {addr}, {src} offset:{off}", "lds_w", rd=[addr, src])
def dma(voff, srd, soff, off=0, flags=""):
    assert 0 <= off < 4096
    return I(f"buffer_load_dwordx4 {voff}, {srd}, {soff} offen offset:{off}{(' ' + flags) if flags else ''} lds", "dma", rd=[voff, srd, soff, "m0"])
def bload(dst, voff, srd, soff, off=0, flags=""):
    assert 0 <= off < 4096
    op = {1: "dword", 2: "dwordx2", 4: "dwordx4"}[dst.n]
    return I(f"buffer_load_{op} {dst}, {voff}, {srd}, {soff} offen offset:{off}{(' ' + flags) if flags else ''}", "vmem_l", rd=[voff, srd, soff], wr=[dst])
def bstore(src, voff, srd, soff, off=0, flags=""):
    assert 0 <= off < 4096
    op = {1: "dword", 2: "dwordx2", 4: "dwordx4"}[src.n]
    return I(f"buffer_store_{op} {src}, {voff}, {srd}, {soff} offen offset:{off}{(' ' + flags) if flags else ''}", "vmem_s", rd=[src, voff, srd, soff])
def wait(vm=None, lgkm=None):
    t = "s_waitcnt" + (f" vmcnt({vm})" if vm is not None else "") + (f" lgkmcnt({lgkm})" if lgkm is not None else "")
    i = I(t, "wait"); i.mf = dict(vm=vm, lgkm=lgkm); return i
def nop(n):
    assert 1 <= n <= 16
    return I(f"s_nop {n-1}", "nop", nstates=n)
def barrier(): return I("s_barrier", "barrier")
def label(n): return I(f"{n}:", "label", nstates=0)
def branch(op, tgt): return I(f"{op} {tgt}", "branch", rd=["scc", "vcc"])
def raw(t, kind="other", rd=(), wr=()): return I(t, kind, rd=rd, wr=wr)
def comment(t): return I("; " + t, "label", nstates=0)

def auto_lgkm(trace):
    changes = 0
    pend = []
    last_mfma = None
    for idx, ins in enumerate(trace):
        def apply(n):
            nonlocal pend
            if n is not None and len(pend) > n: pend = pend[len(pend) - n:] if n else []
        apply(ins.pre_lgkm)
        if ins.kind == "wait": apply(ins.mf["lgkm"])
        touched = ins.rd | ins.wr
        need = -1
        for k, (ti, rg) in enumerate(pend):
            if rg & touched: need = k
        if need >= 0:
            ti = pend[need][0]
            if last_mfma is not None and last_mfma > ti and all(trace[q].kind not in ("label", "branch") or trace[q].text.startswith(";") for q in range(last_mfma, idx)):
                n = sum(1 for (t2, _) in pend[need + 1:] if t2 < last_mfma)
                q = trace[last_mfma]
                if q.post_lgkm is None or q.post_lgkm > n: q.post_lgkm = n; changes += 1
            else:
                n = len(pend) - need - 1
                if ins.pre_lgkm is None or ins.pre_lgkm > n: ins.pre_lgkm = n; changes += 1
            pend = pend[need + 1:]
        if ins.kind in ("lds_r", "lds_w") and len(pend) >= 15:
            if last_mfma is not None and last_mfma > pend[-1][0] and all(trace[q].kind not in ("label", "branch") or trace[q].text.startswith(";") for q in range(last_mfma, idx)):
                q = trace[last_mfma]
                if q.post_lgkm is None or q.post_lgkm > 8: q.post_lgkm = 8; changes += 1
            else:
                if ins.pre_lgkm is None or ins.pre_lgkm > 8: ins.pre_lgkm = 8; changes += 1
            pend = pend[-8:]
        if ins.kind == "lds_r": pend.append((idx, set(ins.wr)))
        elif ins.kind == "lds_w": pend.append((idx, set()))
        if ins.kind == "mfma": last_mfma = idx
        apply(ins.post_lgkm)
    return changes

def expand(seq):
    out = []
    for ins in seq:
        if ins.pre_lgkm is not None: out.append(wait(lgkm=ins.pre_lgkm))
        out.append(ins)
        if ins.post_lgkm is not None: out.append(wait(lgkm=ins.post_lgkm))
    return out

VALUK = ("valu", "trans", "perm")
def check_hazards(trace, name=""):
    probs = []
    pos = []; p = 0
    for ins in trace:
        pos.append(p); p += ins.nstates
    n = len(trace)
    def dist(i, j):
        return pos[j] - pos[i] - trace[i].nstates
    for i, a in enumerate(trace):
        if a.kind in ("label", "nop", "wait", "barrier", "branch"): continue
        for j in range(i + 1, min(n, i + 40)):
            b = trace[j]
            d = dist(i, j)
            if d >= 20: break
            need = 0; why = ""
            if a.kind == "mfma":
                D = a.mf["D"]
                if b.kind == "mfma":
                    if D & (b.mf["A"] | b.mf["B"]): need, why = 8, "mfma D->A/B"
                    elif D & b.mf["C"] and b.mf["C"] != D: need, why = 6, "mfma D->C partial"
                elif b.kind in VALUK + ("lds_r", "lds_w", "vmem_l", "vmem_s", "dma"):
                    if D & (b.rd | b.wr): need, why = 8, "mfma D->valu/mem"
                if b.kind in VALUK and a.mf["C"] & b.wr: need, why = max(need, 3), why + " srcC WAR"
            if a.kind in VALUK:
                vw = {r for r in a.wr if r[0] in "va" and r != "vcc"}
                sw = {r for r in a.wr if r[0] == "s" or r == "vcc"}
                if b.kind == "mfma" and vw & b.rd: need, why = max(need, 2), "valu->mfma"
                if b.kind == "perm" and vw & b.rd: need, why = max(need, 2), "valu->perm"
                if a.kind == "trans" and b.kind in ("valu", "perm") and vw & b.rd: need, why = max(need, 1), "trans->valu"
                if ("readfirstlane" in b.text or "readlane" in b.text) and vw & b.rd: need, why = max(need, 1), "valu->readlane"
                if sw & b.rd and b.kind in ("vmem_l", "vmem_s", "dma"): need, why = max(need, 5), "valu sgpr->vmem"
                if sw & b.rd and b.kind in VALUK: need, why = max(need, 2), "valu sgpr->valu"
            if a.kind == "salu" and "m0" in a.wr and b.kind == "dma": need, why = max(need, 1), "m0->dma"
            if a.kind == "vmem_s" and "x4" in a.text and b.kind in VALUK and (a.rd & b.wr): need, why = max(need, 2), "store data WAR"
            if need > d:
                probs.append(f"{name}: hazard {why}: need {need} have {d}:\n    {a.text}\n    {b.text}")
    return probs

def text(seq):
    out = []
    for ins in seq:
        out.append(ins.text if ins.kind == "label" and not ins.text.startswith(";") else "  " + ins.text)
    return "\n".join(out) + "\n"

class Stamps:
    def __init__(self, on, base=60, n=16): self.on, self.base, self.n, self.k = on, base, n, 0
    def __call__(self):
        if not self.on: return []
        k = self.k; self.k += 1; assert k < self.n
        import os
        return [raw(f"{os.environ.get('STOP', 's_memrealtime')} s[{self.base+2*k}:{self.base+2*k+1}]", "smem")]
    def dump(self, wsreg, wave_sgpr, off):
        if not self.on: return []
        o = [raw("s_waitcnt vmcnt(0) lgkmcnt(0)", "other")] + self() + [raw("s_waitcnt lgkmcnt(0)", "other")]
        import os
        if os.environ.get("SPIN"):
            i0, i1 = map(int, os.environ["SPIN"].split(","))
            self.uid = getattr(self, "uid", 0) + 1
            lab = f"L_spin{self.uid}"
            last = self.base + 2 * (self.k - 1)
            o += [raw(f"s_sub_u32 s58, s{self.base+2*i1}, s{self.base+2*i0}", "salu"), raw(f"{lab}:", "label"), raw("s_memrealtime s[56:57]", "smem"), raw("s_waitcnt lgkmcnt(0)", "other"),
                  raw(f"s_sub_u32 s59, s56, s{last}", "salu"), raw("s_cmp_lt_u32 s59, s58", "salu"), raw(f"s_cbranch_scc1 {lab}", "branch")]
            return o
        o.append(raw(f"s_lshl_b32 s58, s2, 2", "salu")); o.append(raw(f"s_add_u32 s58, s58, {wave_sgpr}", "salu"))
        o.append(raw(f"s_mul_i32 s58, s58, {self.n*8}", "salu")); o.append(raw(f"s_add_u32 s58, s58, {off}", "salu"))
        o.append(raw("v_mov_b32 v7, s58", "other")); o.append(raw("s_mov_b64 exec, 1", "other"))
        for i in range(self.n):
            o += [raw(f"v_mov_b32 v4, s{self.base+2*i}", "other"), raw(f"v_mov_b32 v5, s{self.base+2*i+1}", "other"),
                  raw(f"global_store_dwordx2 v7, v[4:5], {wsreg} offset:{8*i}", "other"), raw("s_nop 1", "other")]
        import os
        if os.environ.get("DBGST"):
            for i in range(1, self.n):
                o += [raw(f"s_sub_u32 s58, s{self.base+2*i}, s{self.base}", "salu"), raw("s_lshl_b32 s58, s58, 8", "salu"), raw("s_or_b32 s58, s58, 4", "salu"),
                      raw("v_mov_b32 v4, s58", "other"), raw(f"v_mov_b32 v7, {4*i}", "other"),
                      raw(f"global_atomic_{os.environ['DBGST']} v7, v4, s[96:97] sc1", "other"), raw("s_nop 1", "other")]
        o.append(raw("s_waitcnt vmcnt(0)", "other"))
        return o
```
